```python
import torch

def _softmax(x, axis=-1):
    return torch.softmax(x, dim=axis)
def _gelu(x):
    return torch.nn.functional.gelu(x, approximate="tanh")
def _silu(x):
    return torch.nn.functional.silu(x)
def _sigmoid(x):
    return torch.sigmoid(x)
def _layernorm(x, axis=-1, eps=1e-5):
    m = x.mean(dim=axis, keepdim=True)
    v = x.var(dim=axis, keepdim=True, unbiased=False)
    return (x - m) / torch.sqrt(v + eps)
def _scatter_add(tgt, idx, src, axis=0):
    return tgt.clone().index_add_(axis, idx, src)
def _segment_sum(src, seg, n):
    out = torch.zeros((n,) + src.shape[1:], dtype=src.dtype)
    return out.index_add_(0, seg, src)
def _pad(x, pw):
    flat = tuple(v for pair in reversed(pw) for v in pair)
    return torch.nn.functional.pad(x, flat)

kernel_name = 'parallel_sum__sliding_block__mixer_channel_mlp__prompt'

def setup_inputs():

    _w = (lambda a: (lambda t: t.to(torch.bfloat16) if t.is_floating_point() else t)(torch.as_tensor(a)))
    def _A_setup():
        B, S, D = 1, 2048, 512
        return {
            "x": _w((lambda *s: torch.randn(*s, dtype=torch.bfloat16) * 0.05)(B, S, D)),
            "wqkv": _w((lambda *s: torch.randn(*s, dtype=torch.bfloat16) * 0.05)(D, 3 * D)),
            "wo": _w((lambda *s: torch.randn(*s, dtype=torch.bfloat16) * 0.05)(D, D)),
        }
    _A_in = _A_setup()

    def _B_setup():
        B, S, D, F = 1, 2048, 512, 1376
        return {
            "x": _w((lambda *s: torch.randn(*s, dtype=torch.bfloat16) * 0.05)(B, S, D)),
            "w1": _w((lambda *s: torch.randn(*s, dtype=torch.bfloat16) * 3.2)(D, F) * (D ** -0.5)),
            "b1": _w((lambda *s: torch.randn(*s, dtype=torch.bfloat16) * 1.6)(F)),
            "w2": _w((lambda *s: torch.randn(*s, dtype=torch.bfloat16) * 0.2)(F, D) * (F ** -0.5)),
            "b2": _w((lambda *s: torch.randn(*s, dtype=torch.bfloat16) * 0.2)(D)),
        }
    _B_in = _B_setup()

    return {
        "A_x": _A_in["x"],
        "A_wqkv": _A_in["wqkv"],
        "A_wo": _A_in["wo"],
        "B_x": _B_in["x"],
        "B_w1": _B_in["w1"],
        "B_b1": _B_in["b1"],
        "B_w2": _B_in["w2"],
        "B_b2": _B_in["b2"],
    }

def reference(A_x, A_wqkv, A_wo, B_x, B_w1, B_b1, B_w2, B_b2):
    def _A_ref(x, wqkv, wo):
        B, S, D = x.shape
        H = 32; Dh = D // H; W = 256
        qkv = (lambda x, *d: x.permute(*d))((x @ wqkv).reshape(B, S, 3, H, Dh), 2, 0, 3, 1, 4)
        q, k, v = qkv[0], qkv[1], qkv[2]
        scores = torch.einsum("bhqd,bhkd->bhqk", q, k) * (Dh ** -0.5)
        idx = torch.arange(S)
        mask = (idx[:, None] - idx[None, :] >= 0) & (idx[:, None] - idx[None, :] < W)
        scores = torch.where(mask[None, None], scores, -1e9)
        p = _softmax(scores, axis=-1)
        o = torch.einsum("bhqk,bhkd->bhqd", p, v)
        return (lambda x, *d: x.permute(*d))(o, 0, 2, 1, 3).reshape(B, S, D) @ wo

    def _B_ref(x, w1, b1, w2, b2):
        y = _layernorm(x, axis=-1)
        h = _gelu(torch.einsum("bsd,df->bsf", y, w1) + b1)
        return torch.einsum("bsf,fd->bsd", h, w2) + b2

    x = A_x
    xn = _layernorm(x, axis=-1)
    return x + _A_ref(xn, A_wqkv, A_wo) + _B_ref(xn, B_w1, B_b1, B_w2, B_b2)
```

```python
import re

def regs_of(tok):
    tok = tok.strip()
    neg = tok.lstrip('-')
    if neg.startswith('abs(') or neg.startswith('|'):
        neg = neg.replace('abs(', '').replace(')', '').replace('|', '')
    tok = neg
    m = re.fullmatch(r'([vsa])(\d+)', tok)
    if m: return [(m.group(1), int(m.group(2)))]
    m = re.fullmatch(r'([vsa])\[(\d+):(\d+)\]', tok)
    if m: return [(m.group(1), i) for i in range(int(m.group(2)), int(m.group(3)) + 1)]
    if tok == 'vcc': return [('vcc', 0)]
    if tok in ('vcc_lo', 'vcc_hi'): return [('vcc', 0)]
    if tok in ('exec', 'exec_lo', 'exec_hi'): return [('exec', 0)]
    if tok == 'm0': return [('m0', 0)]
    return []

TRANS = ('v_exp_f32', 'v_log_f32', 'v_rcp_f32', 'v_rsq_f32', 'v_sqrt_f32', 'v_sin_f32', 'v_cos_f32')
def mfma_passes(op):
    if '32x32x16' in op: return 8
    if '16x16x32' in op: return 4
    if '4x4x4' in op: return 2
    raise ValueError(op)

class Ins:
    __slots__ = ('text', 'op', 'ops', 'rd', 'wr', 'kind', 'opt', 'tag', 'mods')
    def __init__(self, text, opt=False, tag=None):
        self.text = text; self.opt = opt; self.tag = tag
        t = text.split(';')[0].strip()
        if t.endswith(':') or t.startswith('.') or not t:
            self.op = 'label' if t.endswith(':') else 'dir'; self.ops = []; self.rd = []; self.wr = []; self.kind = 'label'; self.mods = ''; return
        parts = t.split(None, 1)
        self.op = op = parts[0]
        rest = parts[1] if len(parts) > 1 else ''
        ops = [o.strip() for o in rest.split(',')] if rest else []
        mods = ''
        if ops:
            last = ops[-1].split(None, 1)
            if len(last) > 1 and not op.startswith('s_waitcnt'):
                ops[-1] = last[0]; mods = last[1]
        self.ops = ops; self.mods = mods
        R = [regs_of(o) for o in ops]
        fl = lambda L: [x for l in L for x in l]
        rd, wr = [], []
        if op.startswith('v_mfma'):
            kind = 'mfma'; wr = R[0]; rd = fl(R[1:])
        elif op.startswith('v_cmp'):
            kind = 'valu'; wr = R[0]; rd = fl(R[1:])
        elif op in ('v_readfirstlane_b32', 'v_readlane_b32'):
            kind = 'valu'; wr = R[0]; rd = fl(R[1:])
        elif op.startswith('v_permlane'):
            kind = 'valu'; wr = R[0] + R[1]; rd = R[0] + R[1]
        elif op in ('v_fmac_f32', 'v_writelane_b32') or op.endswith('_dpp'):
            kind = 'valu'; wr = R[0]; rd = fl(R)
        elif op.startswith('v_add_co') or op.startswith('v_addc_co') or op.startswith('v_sub_co'):
            kind = 'valu'; wr = R[0] + R[1]; rd = fl(R[2:])
        elif op.startswith('v_'):
            kind = 'valu'; wr = R[0]; rd = fl(R[1:])
        elif op.startswith('buffer_load') or op.startswith('global_load'):
            if 'lds' in mods.split() or '_lds_' in op:
                kind = 'vmlds'; rd = fl(R) + [('m0', 0)]
            else:
                kind = 'vmload'; wr = R[0]; rd = fl(R[1:])
        elif op.startswith('buffer_store') or op.startswith('global_store'):
            kind = 'vmstore'; rd = fl(R)
        elif op.startswith('ds_read'):
            kind = 'dsread'; wr = R[0]; rd = fl(R[1:])
        elif op.startswith('ds_write'):
            kind = 'dswrite'; rd = fl(R)
            if 'addtid' in op: rd += [('m0', 0)]
        elif op.startswith('s_load') or op in ('s_memtime', 's_memrealtime'):
            kind = 'smem'; wr = R[0]; rd = fl(R[1:])
        elif op == 's_waitcnt': kind = 'wait'
        elif op == 's_nop': kind = 'nop'
        elif op in ('s_barrier', 's_endpgm', 's_setprio', 's_sleep') or op.startswith('s_cbranch') or op == 's_branch':
            kind = 'sctl'
        elif op.startswith('s_cmp') or op.startswith('s_bitcmp'):
            kind = 'salu'; rd = fl(R)
        elif op.startswith('s_'):
            kind = 'salu'; wr = R[0]; rd = fl(R[1:])
            if 'saveexec' in op: wr = wr + [('exec', 0)]
        else:
            raise ValueError('unknown op ' + text)
        self.kind = kind; self.rd = rd; self.wr = wr

class Asm:
    def __init__(self):
        self.ins = []; self._opt = 0; self._ngrp = 0; self.assume = set()
        self.vm = []
        self.lg = []
        self.nlabel = 0
    def __call__(self, text, tag=None):
        for line in text.split('\n'):
            line = line.strip()
            if not line: continue
            i = Ins(line, opt=self._opt, tag=tag)
            self.ins.append(i)
            if i.kind in ('vmlds', 'vmload', 'vmstore'): self.vm.append((tag, i.opt))
            if i.kind in ('dsread', 'dswrite'): self.lg.append((tag, i.opt))
    def label(self, base):
        self.nlabel += 1; return f'L{base}_{self.nlabel}'
    def opt_begin(self, chain=False):
        assert self._opt == 0
        self._ngrp += 1; self._opt = self._ngrp
        if not chain: self.assume = set()
        self.assume.add(self._opt)
    def opt_end(self, chain=False):
        self._opt = 0
        self._chain = set(self.assume) if chain else set()
        self.assume = set()
    def opt_resume_chain(self):
        self.assume = set(self._chain)
    def _younger(self, lst, tags):
        if isinstance(tags, str): tags = [tags]
        last = max((k for k, (t, o) in enumerate(lst) if t in tags), default=None)
        assert last is not None, f'no op tagged {tags}'
        return sum(1 for t, o in lst[last + 1:] if (not o) or o in self.assume)
    def vmn(self, tags): return self._younger(self.vm, tags)
    def lgn(self, tags): return self._younger(self.lg, tags)
    def wait(self, vm=None, lg=None):
        p = []
        if vm is not None:
            n = vm if isinstance(vm, int) else self.vmn(vm)
            p.append(f'vmcnt({min(n, 63)})')
        if lg is not None:
            n = lg if isinstance(lg, int) else self.lgn(lg)
            p.append(f'lgkmcnt({min(n, 15)})')
        self('s_waitcnt ' + ' '.join(p))
    def text(self): return '\n'.join(i.text for i in self.ins)

def check(ins, include_opt=True, verbose=True):
    probs = []
    seq = [i for i in ins if (include_opt or not i.opt) and i.kind != 'label']
    pos = []; p = 0
    for i in seq:
        pos.append(p)
        p += (int(i.ops[0], 0) + 1) if i.kind == 'nop' else 1
    def gap(a, b): return pos[b] - pos[a] - ((int(seq[a].ops[0], 0) + 1) if seq[a].kind == 'nop' else 1)
    WIN = 24
    vmq = []; lgq = []; smq = []
    for b, I in enumerate(seq):
        rd, wr = set(I.rd), set(I.wr)
        a = b - 1
        while a >= 0 and gap(a, b) < 21:
            P = seq[a]; g = gap(a, b); pw = set(P.wr); need = 0; why = ''
            if P.kind == 'valu':
                vw = {r for r in pw if r[0] == 'v'}; sw = {r for r in pw if r[0] in ('s', 'vcc')}
                if I.kind == 'mfma' and vw & rd: need, why = 2, 'valu->mfma'
                if I.kind in ('vmlds', 'vmload', 'vmstore') and sw & rd: need, why = 5, 'valu sgpr->vmem'
                if I.kind == 'valu' and sw & rd:
                    need, why = 2, 'valu sgpr->valu'
                    if I.op in ('v_readlane_b32', 'v_writelane_b32') and set(regs_of(I.ops[2])) & sw: need = 4
                if I.op in ('v_readfirstlane_b32', 'v_readlane_b32') and vw & rd: need, why = max(need, 1), 'valu->readlane'
                if I.op.startswith('v_permlane') and vw & rd: need, why = max(need, 2), 'valu->permlane'
                if 'dpp' in I.mods or 'row_' in I.mods or 'quad_perm' in I.mods:
                    if vw & rd: need, why = max(need, 2), 'valu->dpp'
                if P.op in TRANS and I.kind == 'valu' and I.op not in TRANS and vw & rd: need, why = max(need, 1), 'trans->valu'
                if P.op in TRANS and I.kind in ('vmstore', 'dswrite') and vw & rd: need, why = max(need, 1), 'trans->mem'
            if P.kind == 'mfma':
                ps = mfma_passes(P.op); idx = {2: 0, 4: 1, 8: 2}[ps]
                if I.kind == 'mfma':
                    A = set(regs_of(I.ops[1])) | set(regs_of(I.ops[2])); C = set(regs_of(I.ops[3]))
                    if pw & A: need, why = (5, 8, 12)[idx], 'mfma->mfma AB'
                    elif pw & C:
                        if C == pw and mfma_passes(I.op) == ps: need, why = (2, 0, 0)[idx], 'mfma->mfma C'
                        else: need, why = (4, 6, 10)[idx], 'mfma->mfma C overlap'
                    elif pw & set(I.wr) : need, why = (4, 6, 10)[idx], 'mfma->mfma WAW'
                elif I.kind in ('valu', 'vmload', 'vmstore', 'dsread', 'dswrite', 'vmlds'):
                    if pw & (rd | wr): need, why = (5, 8, 12)[idx], 'mfma D->other'
                    C = set(regs_of(P.ops[3]))
                    if I.kind == 'valu' and C & wr and need < (1, 3, 7)[idx]: need, why = (1, 3, 7)[idx], 'mfma C WAR'
            if P.kind == 'salu' and ('m0', 0) in pw and ('m0', 0) in rd and I.kind in ('vmlds', 'dswrite'): need, why = 1, 'm0->dma'
            if P.kind == 'vmstore' and ('x4' in P.op or 'x3' in P.op):
                D = set(regs_of(P.ops[0] if P.op.startswith('buffer') else P.ops[1]))
                if D & wr: need, why = (2 if I.kind == 'valu' else 1), 'store data WAR'
            if g < need: probs.append(f'HAZARD {why}: need {need} have {g}: [{P.text}] -> [{I.text}]')
            a -= 1
        touched = rd | wr
        for q, nm in ((vmq, 'vm'), (lgq, 'lg'), (smq, 'sm')):
            for (J, dst) in q:
                if dst & touched and I.kind != 'wait':
                    if I.kind in ('vmload',) and nm == 'vm' and not (dst & rd): continue
                    if I.kind == 'dsread' and nm == 'lg' and not (dst & rd): continue
                    probs.append(f'PENDING {nm}: [{J.text}] -> [{I.text}]')
        if I.kind in ('vmload', 'vmlds', 'vmstore'): vmq.append((I, set(I.wr)))
        if I.kind in ('dsread', 'dswrite'): lgq.append((I, set(I.wr)))
        if I.kind == 'smem': smq.append((I, set(I.wr)))
        if I.kind == 'wait':
            t = I.text
            m = re.search(r'vmcnt\((\d+)\)', t)
            if m:
                n = int(m.group(1)); vmq[:] = vmq[len(vmq) - n:] if n < len(vmq) and n else ([] if n == 0 else vmq)
            m = re.search(r'lgkmcnt\((\d+)\)', t)
            if m:
                n = int(m.group(1))
                if n == 0: lgq.clear(); smq.clear()
                else:
                    if any(J.op != 's_memtime' for J, _ in smq): probs.append(f'counted lgkmcnt with smem outstanding: {t}')
                    if n < len(lgq): lgq[:] = lgq[len(lgq) - n:]
        if len(vmq) > 63: probs.append(f'vmcnt overflow at {I.text}')
    return probs
```

```python
import sys, struct
from asmk import Asm, check

NAME = "parallel_sum__sliding_block__mixer_channel_mlp__prompt_kernel"
STAMPS = '--stamps' in sys.argv
FORCE_FB = '--force-fallback' in sys.argv
NOPF = '--nopf' in sys.argv
OUT = [a for a in sys.argv[1:] if not a.startswith('--')][0]
def f32(x): return '0x%08x' % struct.unpack('<I', struct.pack('<f', x))[0]

KF, VF, OF, HF, FL = 0, 2 << 20, 4 << 20, 6 << 20, 12 << 20
FK, FH, FO = FL, FL + 32768, FL + 65536
ST = 13 << 20
WS_SIZE = 14 << 20
K1 = 1024
L_X, L_W0, L_C1 = 0, 48 * K1, 72 * K1
L_BIAS, L_SROW, L_SCOL1, L_ONES, L_SCOL0, L_QX = 144 * K1, 152 * K1, 152 * K1, 154 * K1, 155 * K1, 156 * K1
L_BB, L_BC, L_BD = 72 * K1, 48 * K1, 96 * K1
LDS_BYTES = 160 * K1
REDP = 272
S_X, S_WQ, S_W1, S_W2, S_WO, S_WS, S_OUT, S_C1, S_B, S_DBG = [f's[{b}:{b+3}]' for b in range(28, 68, 4)]
def srd(name): return int(name[2:name.index(':')])
sW, sRB, sJ, sROT, sRT, sCT, sSW = 's68', 's69', 's70', 's71', 's72', 's73', 's74'
sXO, sWO_, sC1B, sC1S, sTS = 's75', 's76', 's77', 's78', 's79'
sT0, sT1, sT2, sT3 = 's80', 's81', 's82', 's83'
sNON = 's[84:85]'; sNL, sNH = 's84', 's85'
sU, sV, sKQ, sCH, sGS, sTMAX, sSPIN = 's86', 's87', 's88', 's89', 's90', 's91', 's92'
sT4, sT5 = 's93', 's94'
sM1, sM2, sM3 = 's[4:5]', 's[6:7]', 's[8:9]'
sCMP = 's[10:11]'
sSTMP = 's[96:97]'; sST0 = 's[98:99]'
def vr(b, n=1): return f'v{b}' if n == 1 else f'v[{b}:{b+n-1}]'
vL16, vBDMA, vSTMP, vNON = 1, 2, 3, 4
t0, t1, t2 = 6, 7, 8
vK0, vK1, vIRR = 9, 10, 11
vXD0, vXD1, vWD, vC1D0, vC1D1, vB1, vR1 = 12, 13, 14, 15, 16, 17, 19
vXA, vWA, vU0, vU1A, vU1B, vT, vF, vSEL, vCS0, vCS1, vRS, vSQ, vWB = 20, 24, 28, 32, 36, 40, 44, 52, 56, 60, 64, 68, 72
vAC0, vAC1, vXF = 96, 112, 128
vKA, vVA, vVST, vBIA = 8, 9, 10, 11
vQ, vKB, vVB, vS0, vP, vO = 44, 48, 56, 72, 104, 112
vBF = 160
vAA, vAA2, vBA4, vBA5, vPOL = 8, 9, 10, 11, 12
vAB, vBD, vXR, vB2 = 72, 128, 152, 156

A = Asm()
nstamp = [0]; stamp_names = []
def stamp(name):
    if not STAMPS: return
    A(f's_memtime {sSTMP}'); A('s_waitcnt lgkmcnt(0)'); A('s_sub_u32 s96, s96, s98'); A(f'v_writelane_b32 v{vSTMP}, s96, {nstamp[0]}')
    nstamp[0] += 1; stamp_names.append(name)

def mk_srd(name, plo, size):
    b = srd(name)
    A(f's_mov_b32 s{b}, s{plo}'); A(f's_and_b32 s{b+1}, s{plo+1}, 0xffff'); A(f's_mov_b32 s{b+2}, {size}'); A(f's_mov_b32 s{b+3}, 0x20000')

def dma(vaddr, srdn, soff, off=0, tag=None, sc1=False):
    o = f' offset:{off}' if off else ''
    A(f'buffer_load_dwordx4 v{vaddr}, {srdn}, {soff} offen{o}{" sc1" if sc1 else ""} lds', tag=tag)

def poll_issue(vaddr, P, tag):
    A(f'buffer_load_dwordx2 {vr(P,2)}, v{vaddr}, {S_WS}, 0 offen sc1', tag=tag)
def poll_finish(vaddr, P, tag):
    L = A.label('sp'); E = A.label('spe')
    A.wait(vm=tag)
    A(f'v_cmp_ne_u64 vcc, {sNON}, {vr(P,2)}')
    A(f's_mov_b32 {sSPIN}, 0')
    A(f's_cbranch_vccz {E}')
    A.opt_begin()
    A(f'{L}:')
    A(f'buffer_load_dwordx2 {vr(P,2)}, v{vaddr}, {S_WS}, 0 offen sc1', tag='spin')
    A(f's_add_u32 {sSPIN}, {sSPIN}, 1')
    A.wait(vm=0)
    A(f'v_cmp_ne_u64 vcc, {sNON}, {vr(P,2)}')
    A(f's_cmp_ge_u32 {sSPIN}, 0x8000'); A(f's_cbranch_scc1 {E}')
    A(f's_cbranch_vccnz {L}')
    A.opt_end()
    A(f'{E}:')

def publish(base, tmp):
    A(f's_lshl_b32 {sT0}, {sRB}, 4'); A(f's_add_u32 {sT0}, {sT0}, {sJ}'); A(f's_lshl_b32 {sT0}, {sT0}, 7')
    A(f's_lshl_b32 {sT1}, {sW}, 3'); A(f's_add_u32 {sT0}, {sT0}, {sT1}'); A(f's_add_u32 {sT0}, {sT0}, {base}')
    A(f'v_mov_b32 v{tmp}, 0')
    A('s_mov_b64 exec, 1')
    A(f'buffer_store_dwordx2 {vr(vNON,2)}, v{tmp}, {S_WS}, {sT0} offen sc1', tag='flag')
    A('s_mov_b64 exec, -1')

A('s_cmp_ge_u32 s2, 256'); A('s_cbranch_scc1 L_end')
if STAMPS: A(f's_memtime {sST0}')
A('s_load_dwordx16 s[4:19], s[0:1], 0'); A('s_load_dwordx4 s[20:23], s[0:1], 64'); A('s_load_dwordx2 s[24:25], s[0:1], 80')
A('v_lshrrev_b32 v1, 6, v0'); A('v_and_b32 v0, 63, v0'); A(f'v_readfirstlane_b32 {sW}, v1')
A(f's_and_b32 {sT0}, s2, 7'); A(f's_lshr_b32 {sT1}, s2, 3')
A(f's_and_b32 {sRB}, {sT0}, 1'); A(f's_lshl_b32 {sRB}, {sRB}, 3'); A(f's_and_b32 {sT2}, {sT1}, 7'); A(f's_add_u32 {sRB}, {sRB}, {sT2}')
A(f's_lshr_b32 {sJ}, {sT0}, 1'); A(f's_lshl_b32 {sJ}, {sJ}, 2'); A(f's_lshr_b32 {sT3}, {sT1}, 3'); A(f's_add_u32 {sJ}, {sJ}, {sT3}')
A(f's_lshl_b32 {sROT}, {sT3}, 1'); A(f's_add_u32 {sROT}, {sROT}, {sT2}'); A(f's_and_b32 {sROT}, {sROT}, 7')
A(f's_lshl_b32 {sU}, {sT0}, 2'); A(f's_and_b32 {sT2}, {sT1}, 3'); A(f's_add_u32 {sU}, {sU}, {sT2}'); A(f's_lshr_b32 {sV}, {sT1}, 2')
if STAMPS: A(f'v_mov_b32 v{vSTMP}, 0')
vPF = 100
if not NOPF:
    Lpf = A.label('pf')
    A(f's_cmp_lg_u32 {sW}, 7'); A(f's_cbranch_scc1 {Lpf}')
    A.opt_begin()
    b = srd(S_B)
    A(f's_getpc_b64 s[{b}:{b+1}]'); A(f's_and_b32 s{b+1}, s{b+1}, 0xffff'); A(f's_mov_b32 s{b+2}, L_codeend-{Lpf}'); A(f's_mov_b32 s{b+3}, 0x20000')
    A(f's_and_b32 {sT1}, {sT1}, 3'); A(f's_lshl_b32 {sT1}, {sT1}, 13')
    A(f'v_lshlrev_b32 v{vPF}, 7, v0')
    A(f'buffer_load_dword v{vPF}, v{vPF}, {S_B}, {sT1} offen', tag='pf')
    A.opt_end()
    A(f'{Lpf}:')
A(f's_and_b32 {sRT}, {sW}, 3'); A(f's_lshr_b32 {sCT}, {sW}, 2')
A(f's_lshl_b32 {sSW}, {sCT}, 1'); A(f's_xor_b32 {sSW}, {sSW}, {sRT}')
A('v_lshrrev_b32 v72, 3, v0'); A('v_lshrrev_b32 v73, 4, v0'); A('v_and_b32 v74, 7, v0')
A('v_xor_b32 v75, v74, v73'); A('v_lshlrev_b32 v75, 4, v75'); A(f'v_lshl_add_u32 v{vXD0}, v72, 10, v75')
A(f'v_xor_b32 v{vXD1}, 64, v{vXD0}'); A(f'v_add_u32 v{vXD1}, {8192-1024}, v{vXD1}')
A('v_and_b32 v73, 1, v73'); A('v_lshlrev_b32 v73, 2, v73'); A('v_xor_b32 v75, v74, v73'); A('v_lshlrev_b32 v75, 4, v75')
A(f'v_mul_u32_u24 v{vWD}, 3072, v72'); A(f'v_add_u32 v{vWD}, v{vWD}, v75')
A(f'v_lshl_add_u32 v{vBDMA}, v72, 10, v75')
A(f's_lshl_b32 {sXO}, {sRB}, 17'); A(f's_lshl_b32 {sT0}, {sW}, 14'); A(f's_add_u32 {sXO}, {sXO}, {sT0}')
A(f's_and_b32 {sT0}, {sJ}, 1'); A(f's_lshl_b32 {sT0}, {sT0}, 10'); A(f's_lshr_b32 {sT1}, {sJ}, 1'); A(f's_lshl_b32 {sT1}, {sT1}, 7')
A(f's_add_u32 {sWO_}, {sT0}, {sT1}'); A(f's_mul_i32 {sT0}, {sW}, {8*3072}'); A(f's_add_u32 {sWO_}, {sWO_}, {sT0}'); A(f's_add_u32 {sWO_}, {sWO_}, 1024')
A('s_waitcnt lgkmcnt(0)')
mk_srd(S_X, 4, 2048 * 1024); mk_srd(S_WQ, 6, 512 * 3072)

def kb_of(s, dst):
    A(f's_add_u32 {dst}, {sROT}, {s}'); A(f's_and_b32 {dst}, {dst}, 7')
def dma_c0(s):
    slot = s % 3
    kb_of(s, sT0)
    A(f's_lshl_b32 {sT1}, {sT0}, 7'); A(f's_add_u32 {sT1}, {sT1}, {sXO}')
    A(f's_lshl_b32 {sT2}, {sW}, 11'); A(f's_add_u32 m0, {sT2}, {L_X + slot*16384}')
    A(f's_mul_i32 {sT0}, {sT0}, {64*3072}')
    dma(vXD0, S_X, sT1, 0, tag=f'c0s{s}'); dma(vXD1, S_X, sT1, 1024, tag=f'c0s{s}')
    A(f's_lshl_b32 {sT2}, {sW}, 10'); A(f's_add_u32 m0, {sT2}, {L_W0 + slot*8192}')
    A(f's_add_u32 {sT0}, {sT0}, {sWO_}')
    dma(vWD, S_WQ, sT0, 0, tag=f'c0s{s}')
def dma_c1(s):
    slot = s % 3
    kb_of(s, sT0)
    A(f's_lshl_b32 {sT2}, {sW}, 11'); A(f's_add_u32 m0, {sT2}, {L_C1 + slot*16384}')
    A(f's_mul_i32 {sT0}, {sT0}, {sC1S}'); A(f's_add_u32 {sT0}, {sT0}, {sC1B}')
    dma(vC1D0, S_C1, sT0, 0, tag=f'c1s{s}'); dma(vC1D1, S_C1, sT0, 1024, tag=f'c1s{s}')
for s in range(3): dma_c0(s)
stamp('dma0')
mk_srd(S_W1, 12, 512 * 2752); mk_srd(S_W2, 16, 1376 * 1024); mk_srd(S_WO, 8, 512 * 1024)
mk_srd(S_WS, 24, WS_SIZE); mk_srd(S_OUT, 20, 2048 * 1024); mk_srd(S_DBG, 22, 256)
Ln = A.label('non')
A(f's_or_b32 {sT0}, s2, {sW}'); A(f's_cmp_lg_u32 {sT0}, 0'); A(f's_cbranch_scc1 {Ln}')
A.opt_begin()
A(f's_memrealtime {sNON}'); A(f'v_mov_b32 v{t0}, 0'); A('s_waitcnt lgkmcnt(0)')
A(f's_or_b32 {sNH}, {sNH}, 0x80000000'); A(f'v_mov_b32 v{vNON}, {sNL}'); A(f'v_mov_b32 v{vNON+1}, {sNH}')
A('s_mov_b64 exec, 1')
A(f'buffer_store_dwordx2 {vr(vNON,2)}, v{t0}, {S_DBG}, 0 offen sc1', tag='nonst')
A('s_mov_b64 exec, -1')
A.opt_end()
A(f'{Ln}:')
A(f's_mul_i32 {sT0}, {sJ}, 3'); A(f's_lshl_b32 {sT1}, {sJ}, 1'); A(f's_add_u32 {sT1}, {sT1}, 11'); A(f's_min_u32 {sTS}, {sT0}, {sT1}')
b = srd(S_C1)
A(f's_mov_b32 {sT0}, {512*2752}'); A(f's_mov_b32 {sT1}, {64*2752}')
A(f's_cmp_ge_u32 {sW}, 6')
A(f's_cselect_b32 s{b}, s6, s12'); A(f's_cselect_b32 s{b+1}, s7, s13'); A(f's_cselect_b32 s{b+2}, {512*3072}, {sT0}')
A(f's_cselect_b32 {sC1S}, {64*3072}, {sT1}'); A(f's_cselect_b32 {sC1B}, {sJ}, {sTS}')
A(f's_and_b32 s{b+1}, s{b+1}, 0xffff'); A(f's_mov_b32 s{b+3}, 0x20000'); A(f's_lshl_b32 {sC1B}, {sC1B}, 6')
Lq, Lq2 = A.label('q'), A.label('q2')
A(f's_cmp_ge_u32 {sW}, 6'); A(f's_cbranch_scc1 {Lq}')
A(f's_lshl_b32 {sT0}, {sW}, 7')
for d, add in ((vC1D0, 0), (vC1D1, 64)):
    A(f'v_add_u32 v72, {sT0}, v0')
    if add: A(f'v_add_u32 v72, {add}, v72')
    A('v_mul_u32_u24 v73, 5462, v72'); A('v_lshrrev_b32 v73, 16, v73')
    A('v_mul_u32_u24 v74, 12, v73'); A('v_sub_u32 v74, v72, v74'); A('v_lshlrev_b32 v74, 4, v74')
    A('v_mul_u32_u24 v73, 2752, v73'); A(f'v_add_u32 v{d}, v73, v74')
A(f's_branch {Lq2}')
A(f'{Lq}:')
A(f's_sub_u32 {sT0}, {sW}, 6'); A(f's_lshl_b32 {sT0}, {sT0}, 5')
A('v_lshrrev_b32 v72, 2, v0'); A(f'v_add_u32 v72, {sT0}, v72'); A('v_mul_u32_u24 v72, 3072, v72')
A('v_and_b32 v73, 3, v0'); A(f'v_lshl_add_u32 v{vC1D0}, v73, 4, v72'); A(f'v_add_u32 v{vC1D1}, {16*3072}, v{vC1D0}')
A(f'{Lq2}:')
A(f'v_subrev_u32 v{vC1D1}, 1024, v{vC1D1}')
assert all(c // 12 == (c * 5462) >> 16 for c in range(768))
mk_srd(S_B, 14, 1376 * 2)
A('v_and_b32 v72, 31, v0'); A('v_lshlrev_b32 v72, 1, v72')
A(f's_add_u32 {sT0}, {sTS}, {sCT}'); A(f's_lshl_b32 {sT0}, {sT0}, 6')
A(f'buffer_load_ushort v{vB1}, v72, {S_B}, {sT0} offen', tag='b1')
A(f's_add_u32 {sT0}, {sTS}, 2'); A(f's_lshl_b32 {sT0}, {sT0}, 6'); A(f's_cmp_eq_u32 {sCT}, 0'); A(f's_cselect_b32 {sT0}, 0x10000, {sT0}')
A(f'buffer_load_ushort v{vB1+1}, v72, {S_B}, {sT0} offen', tag='b1')
A(f'v_lshlrev_b32 v{vL16}, 4, v0')
A('v_and_b32 v73, 31, v0'); A('v_lshrrev_b32 v74, 5, v0')
A('v_bfe_u32 v75, v0, 1, 3'); A('v_xor_b32 v75, v75, v74'); A('v_lshlrev_b32 v75, 4, v75')
A(f's_lshl_b32 {sT0}, {sRT}, 12'); A(f's_lshl_b32 {sT1}, {sSW}, 5')
A('v_lshl_add_u32 v75, v73, 7, v75'); A(f'v_add_u32 v75, {sT0}, v75'); A(f'v_xor_b32 v{vXA}, {sT1}, v75')
for p in range(1, 4): A(f'v_xor_b32 v{vXA+p}, {p << 5}, v{vXA}')
def tr_lane_parts(r4, c4, chf, out, tmp):
    A(f'v_bfe_u32 v{r4}, v0, 2, 2'); A(f'v_and_b32 v{c4}, 3, v0'); A(f'v_bfe_u32 v{chf}, v0, 4, 1')
    A(f'v_lshrrev_b32 v{out}, 1, v{c4}'); A(f'v_lshl_add_u32 v{out}, v{chf}, 1, v{out}')
    A(f'v_bfe_u32 v{tmp}, v0, 3, 1'); A(f'v_lshlrev_b32 v{tmp}, 2, v{tmp}'); A(f'v_xor_b32 v{out}, v{out}, v{tmp}')
    A(f'v_lshlrev_b32 v{out}, 4, v{out}'); A(f'v_and_b32 v{tmp}, 1, v{c4}'); A(f'v_lshl_add_u32 v{out}, v{tmp}, 3, v{out}')
tr_lane_parts(76, 77, 78, 79, 80)
A('v_lshl_add_u32 v81, v74, 3, v76')
A(f's_lshl_b32 {sT0}, {sCT}, 6'); A(f's_lshl_b32 {sT1}, {sSW}, 11'); A(f's_add_u32 {sT1}, {sT1}, {L_W0}')
A(f'v_xor_b32 v80, {sT0}, v79'); A('v_lshl_add_u32 v80, v81, 7, v80'); A(f'v_add_u32 v{vWA}, {sT1}, v80')
for p in range(1, 4): A(f'v_xor_b32 v{vWA+p}, {p << 11}, v{vWA}')
A('v_lshlrev_b32 v79, 5, v78'); A('v_lshl_add_u32 v79, v77, 3, v79')
A('v_mul_u32_u24 v80, 192, v81'); A('v_add_u32 v80, v80, v79')
A(f's_mov_b32 {sT0}, {L_C1+128}')
A(f's_cmp_eq_u32 {sCT}, 0'); A(f's_cselect_b32 {sT2}, 64, 192'); A(f's_cselect_b32 {sT3}, {L_C1+12288}, {sT0}')
A(f'v_mul_u32_u24 v81, {sT2}, v81'); A('v_add_u32 v81, v81, v79')
for p in range(4):
    A(f's_xor_b32 {sT0}, {sSW}, {p}'); A(f's_mul_i32 {sT1}, {sT0}, 3072'); A(f's_lshl_b32 {sT4}, {sCT}, 6')
    A(f's_add_u32 {sT1}, {sT1}, {sT4}'); A(f's_add_u32 {sT1}, {sT1}, {L_C1}'); A(f'v_add_u32 v{vU0+p}, {sT1}, v80')
    A(f's_mul_i32 {sT1}, {sT0}, {sT2}'); A(f's_lshl_b32 {sT1}, {sT1}, 4'); A(f's_add_u32 {sT1}, {sT1}, {sT3}')
    A(f'v_add_u32 v{vU1A+p}, {sT1}, v81'); A(f's_lshl_b32 {sT4}, {sT2}, 2'); A(f'v_add_u32 v{vU1B+p}, {sT4}, v{vU1A+p}')
A('v_and_b32 v75, 3, v0'); A('v_lshrrev_b32 v76, 2, v0'); A('v_lshrrev_b32 v77, 4, v0'); A('v_xor_b32 v76, v76, v77'); A('v_and_b32 v76, 1, v76'); A('v_or_b32 v75, v75, v76')
A('v_cmp_eq_u32 vcc, 0, v75'); A('v_mov_b32 v84, 0x3f803f80'); A('v_mov_b32 v85, v84')
for r in range(4): A(f'v_cndmask_b32 v{vSEL+r}, 0, v84, vcc')
A('v_mov_b32 v86, v84'); A('v_mov_b32 v87, v84')
A(f'v_add_u32 v75, {L_ONES}, v{vL16}'); A('ds_write_b128 v75, v[84:87]', tag='init')
A('v_lshlrev_b32 v76, 2, v74'); A('v_sub_u32 v76, v73, v76'); A(f's_lshl_b32 {sT0}, {sRT}, 3'); A(f'v_subrev_u32 v76, {sT0}, v76')
NEG = f32(-1e30)
A(f's_cmp_eq_u32 {sCT}, 0'); A(f's_cselect_b32 {sT0}, 0, {NEG}'); A(f's_cselect_b32 {sT1}, {NEG}, 0')
A(f'v_mov_b32 v77, {sT0}'); A(f'v_mov_b32 v78, {sT1}')
for i in range(4):
    A(f'v_cmp_le_i32 vcc, {i}, v76'); A('s_nop 1'); A(f'v_cndmask_b32 v{88+i}, v78, v77, vcc')
A(f's_lshl_b32 {sT0}, {sW}, 10'); A(f's_add_u32 {sT0}, {sT0}, {L_BIAS}'); A(f'v_add_u32 v75, {sT0}, v{vL16}'); A('ds_write_b128 v75, v[88:91]', tag='init')
A('s_mov_b32 s26, s18'); A('s_mov_b32 s27, s19')
A('s_mov_b32 s4, 0x22222222'); A('s_mov_b32 s5, 0x22222222'); A('s_mov_b32 s6, 0x44444444'); A('s_mov_b32 s7, 0x44444444'); A('s_mov_b32 s8, 0x88888888'); A('s_mov_b32 s9, 0x88888888')
A(f's_and_b32 {sCH}, {sW}, 1'); A(f's_lshr_b32 {sKQ}, {sW}, 1')
A(f's_mul_i32 {sGS}, {sKQ}, 22'); A(f's_cmp_eq_u32 {sKQ}, 3'); A(f's_cselect_b32 {sGS}, 65, {sGS}')
A(f's_lshl_b32 {sTMAX}, {sRB}, 2'); A(f's_add_u32 {sTMAX}, {sTMAX}, {sRT}')
A.wait(lg=0)
stamp('setup')

def dma_b(b0, b1, tag):
    A(f's_lshl_b32 {sT0}, {sCH}, 10'); A(f's_add_u32 {sT4}, {sT4}, {sT0}')
    A(f's_lshl_b32 {sT5}, {sCH}, 13'); A(f's_lshl_b32 {sT0}, {sV}, 7'); A(f's_add_u32 {sT5}, {sT5}, {sT0}')
    for bb in range(b0, b1):
        if bb < 22:
            A(f's_add_u32 {sT0}, {sGS}, {bb}'); sn = S_W2
        else:
            A(f's_lshl_b32 {sT0}, {sKQ}, 3'); A(f's_add_u32 {sT0}, {sT0}, {bb-22}'); sn = S_WO
        A(f's_add_u32 m0, {sT4}, {(bb-b0)*2048}')
        A(f's_lshl_b32 {sT0}, {sT0}, 14'); A(f's_add_u32 {sT0}, {sT0}, {sT5}')
        dma(vBDMA, sn, sT0, 0, tag=tag)
def base_A():
    A(f's_mov_b32 {sT0}, {48*K1}')
    A(f's_mul_i32 {sT4}, {sKQ}, {12*K1}'); A(f's_cmp_ge_u32 {sKQ}, 2'); A(f's_cselect_b32 {sT0}, {96*K1}, {sT0}'); A(f's_add_u32 {sT4}, {sT4}, {sT0}')
def base_lin(base, step):
    A(f's_mul_i32 {sT4}, {sKQ}, {step}'); A(f's_add_u32 {sT4}, {sT4}, {base}')

def kloop(pref, reads, mfmas, hook, prelast, last_reads):
    A.wait(vm=f'{pref}s0'); A('s_barrier')
    reads(0); reads(1)
    for n in range(31):
        if (n + 2) % 4 == 0:
            s = (n + 2) // 4
            if s == 8: prelast()
            A.wait(lg=0); mfmas(n)
            if s < 8: A.wait(vm=f'{pref}s{s}')
            A('s_barrier')
            if s < 8: reads(n + 2)
            else: last_reads(); mfmas(31)
            hook(s)
        else:
            reads(n + 2)
            A.wait(lg=f'{pref}r{n}'); mfmas(n)

def c0_reads(n):
    s, p = divmod(n, 4); slot = s % 3; wb = vWB + 8 * (n % 3); t = f'c0r{n}'
    A(f'ds_read_b128 {vr(vXF+4*n,4)}, v{vXA+p} offset:{L_X + slot*16384}', tag=t)
    A(f'ds_read_b64_tr_b16 {vr(wb,2)}, v{vWA+p} offset:{slot*8192}', tag=t)
    A(f'ds_read_b64_tr_b16 {vr(wb+2,2)}, v{vWA+p} offset:{slot*8192+512}', tag=t)
def c0_mfmas(n):
    p = n % 4; wb = vWB + 8 * (n % 3); x = vXF + 4 * n
    z = n == 0
    if p < 2:
        A(f'v_mfma_f32_4x4x4_16b_bf16 {vr(vSQ,4)}, {vr(x,2)}, {vr(x,2)}, {0 if z else vr(vSQ,4)}')
        A(f'v_mfma_f32_16x16x32_bf16 {vr(vRS,4)}, {vr(vSEL,4)}, {vr(x,4)}, {0 if z else vr(vRS,4)}')
        if p == 0: A(f'v_mfma_f32_16x16x32_bf16 {vr(vCS0,4)}, {vr(vSEL,4)}, {vr(wb,4)}, {0 if z else vr(vCS0,4)}')
        else: A('s_nop 0')
        A(f'v_mfma_f32_4x4x4_16b_bf16 {vr(vSQ,4)}, {vr(x+2,2)}, {vr(x+2,2)}, {vr(vSQ,4)}')
    A(f'v_mfma_f32_32x32x16_bf16 {vr(vAC0,16)}, {vr(wb,4)}, {vr(x,4)}, {0 if z else vr(vAC0,16)}')
def c0_hook(s):
    if s + 2 <= 7: dma_c0(s + 2)
    else: dma_c1(s - 6)
    if s == 4:
        A(f'v_mov_b32 v{t0}, 0')
        A(f'buffer_load_dwordx2 {vr(vNON,2)}, v{t0}, {S_DBG}, 0 offen sc1', tag='non')
    stamp(f'c0b{s}')
def c0_prelast():
    A(f'v_and_b32 v{t0}, 31, v0'); A(f's_lshl_b32 {sT0}, {sW}, 8'); A(f's_add_u32 {sT0}, {sT0}, {L_SROW}')
    A(f'v_lshl_add_u32 v{t1}, v{t0}, 3, {sT0}')
    A(f's_lshl_b32 {sT0}, {sCT}, 9'); A(f's_lshl_b32 {sT1}, {sRT}, 2'); A(f's_add_u32 {sT0}, {sT0}, {sT1}'); A(f's_add_u32 {sT0}, {sT0}, {L_SCOL0}')
    A(f'v_lshl_add_u32 v{t2}, v{t0}, 4, {sT0}')
    A(f'v_cndmask_b32 v{vSQ}, v{vSQ}, v{vSQ+1}, {sM1}'); A(f'v_cndmask_b32 v{vSQ}, v{vSQ}, v{vSQ+2}, {sM2}'); A(f'v_cndmask_b32 v{vSQ}, v{vSQ}, v{vSQ+3}, {sM3}')
    A(f'v_mov_b32 v{vSQ+1}, v{vSQ}')
    A(f'ds_write_b32 v{t2}, v{vCS0}', tag='st')
    A('s_nop 0')
    A(f'v_permlane32_swap_b32 v{vSQ}, v{vSQ+1}')
    A(f'v_add_f32 v{vRS+1}, v{vSQ}, v{vSQ+1}')
    A(f'ds_write_b64 v{t1}, {vr(vRS,2)}', tag='st')
def c0_lastreads():
    A(f'v_xor_b32 v{t1}, 1024, v{t1}')
    A(f's_lshl_b32 {sT1}, {sRT}, 2'); A(f'v_subrev_u32 v{t2}, {sT1}, v{t2}')
    A(f'ds_read_b64 {vr(vSQ,2)}, v{t1}', tag='str'); A(f'ds_read_b128 {vr(vCS1,4)}, v{t2}', tag='str')
kloop('c0', c0_reads, c0_mfmas, c0_hook, c0_prelast, c0_lastreads)

def feat_frag(F, C, b1):
    A(f'v_add_f32 v{C}, v{C}, v{C+1}'); A(f'v_add_f32 v{C+2}, v{C+2}, v{C+3}'); A(f'v_add_f32 v{C}, v{C}, v{C+2}')
    A(f'v_cvt_pk_bf16_f32 v{F}, v{C}, v{C}'); A(f'v_and_b32 v{C+1}, 0xffff0000, v{F}'); A(f'v_sub_f32 v{C+1}, v{C}, v{C+1}')
    A(f'v_cvt_pk_bf16_f32 v{F+1}, v{C+1}, 0')
    if b1 is None: A(f'v_mov_b32 v{F+2}, 0')
    else: A(f'v_lshl_or_b32 v{F+1}, v{b1}, 16, v{F+1}'); A(f'v_mov_b32 v{F+2}, v{b1}')
    A(f'v_mov_b32 v{F+3}, 0')

EPS = f32(1e-5)
m, var = vRS, vRS + 1
A.wait(lg='str')
A(f'v_add_f32 v{m}, v{vRS}, v{vSQ}'); A(f'v_add_f32 v{var}, v{vRS+1}, v{vSQ+1}')
A(f'v_mul_f32 v{m}, {f32(-1/512)}, v{m}'); A(f'v_mul_f32 v{var}, {f32(1/512)}, v{var}')
A(f'v_fma_f32 v{var}, -v{m}, v{m}, v{var}'); A(f'v_max_f32 v{var}, 0, v{var}')
A(f'v_add_f32 v{vSQ}, {EPS}, v{var}'); A(f'v_rsq_f32 v{vR1}, v{vSQ}')
feat_frag(vF, vCS1, None)
A(f'v_mul_f32 v{vSQ}, v{var}, v{vR1}'); A(f'v_mov_b32 v{vSQ+1}, {EPS}'); A(f'v_fma_f32 v{vSQ}, v{vSQ}, v{vR1}, v{vSQ+1}'); A(f'v_rsq_f32 v{vSQ}, v{vSQ}')
A(f'v_cvt_pk_bf16_f32 v{vT}, v{m}, v{m}'); A(f'v_and_b32 v{vT}, 0xffff0000, v{vT}'); A(f'v_sub_f32 v{vT}, v{m}, v{vT}'); A(f'v_cvt_pk_bf16_f32 v{vT}, v{m}, v{vT}')
A(f'v_mul_f32 v{vSQ}, v{vSQ}, v{vR1}'); A(f'v_rcp_f32 v{vIRR}, v{vSQ}')
GC0 = -2.0 * 1.4426950408889634 * 0.7978845608028654
A(f'v_mul_f32 v{vK0}, {f32(GC0)}, v{vSQ}'); A(f'v_mul_f32 v{vK1}, v{vSQ}, v{vSQ}'); A(f'v_mul_f32 v{vK1}, v{vK1}, v{vK0}'); A(f'v_mul_f32 v{vK1}, {f32(0.044715)}, v{vK1}')
A(f'v_cvt_pk_bf16_f32 v{vT+1}, v{m}, v{vIRR}'); A(f'v_and_b32 v{vT+2}, 0xffff0000, v{vT+1}'); A(f'v_sub_f32 v{vT+2}, v{vIRR}, v{vT+2}'); A(f'v_cvt_pk_bf16_f32 v{vT+2}, v{vT+2}, 0')
A(f'v_mov_b32 v{vT+3}, 0')
A('s_mov_b32 exec_lo, 0')
for r in range(3): A(f'v_mov_b32 v{vT+r}, 0')
A('s_mov_b32 exec_lo, -1')
A(f'v_and_b32 v{t0}, 31, v0'); A(f'v_lshrrev_b32 v{t1}, 5, v0'); A(f'v_lshlrev_b32 v{t0}, 5, v{t0}'); A(f'v_lshl_add_u32 v{t0}, v{t1}, 4, v{t0}')
A(f'v_mfma_f32_32x32x16_bf16 {vr(vAC0,16)}, {vr(vF,4)}, {vr(vT,4)}, {vr(vAC0,16)}')
A(f's_bitcmp1_b32 {sJ}, 0'); A(f's_cselect_b64 {sCMP}, -1, 0'); A(f's_cselect_b32 {sT0}, {VF}, {KF}')
A(f'v_cndmask_b32 v{t0}, v{vL16}, v{t0}, {sCMP}')
A(f's_lshr_b32 {sT1}, {sJ}, 1'); A(f's_lshl_b32 {sT1}, {sT1}, 1'); A(f's_add_u32 {sT1}, {sT1}, {sCT}'); A(f's_lshl_b32 {sT1}, {sT1}, 17')
A(f's_add_u32 {sT0}, {sT0}, {sT1}'); A(f's_lshl_b32 {sT1}, {sTMAX}, 10'); A(f's_add_u32 {sT0}, {sT0}, {sT1}'); A(f's_add_u32 {sT1}, {sT0}, 65536')
A('s_nop 0')
for r in range(16): A(f'v_mul_f32 v{vAC0+r}, v{vR1}, v{vAC0+r}')
for r in range(8): A(f'v_cvt_pk_bf16_f32 v{vAC0+r}, v{vAC0+2*r}, v{vAC0+2*r+1}')
A(f'buffer_store_dwordx4 {vr(vAC0,4)}, v{t0}, {S_WS}, {sT0} offen sc1', tag='kvst')
A(f'buffer_store_dwordx4 {vr(vAC0+4,4)}, v{t0}, {S_WS}, {sT1} offen sc1', tag='kvst')
Lg, Lge = A.label('ng'), A.label('nge')
A.wait(vm='non')
A(f'v_readfirstlane_b32 {sNH}, v{vNON+1}'); A(f's_mov_b32 {sSPIN}, 0'); A(f's_cmp_lg_u32 {sNH}, 0'); A(f's_cbranch_scc1 {Lge}')
A.opt_begin()
A(f'v_mov_b32 v{t1}, 0')
A(f'{Lg}:')
A(f'buffer_load_dwordx2 {vr(vNON,2)}, v{t1}, {S_DBG}, 0 offen sc1', tag='spin')
A(f's_add_u32 {sSPIN}, {sSPIN}, 1'); A.wait(vm=0)
A(f'v_readfirstlane_b32 {sNH}, v{vNON+1}'); A(f's_cmp_ge_u32 {sSPIN}, 0x8000'); A(f's_cbranch_scc1 {Lge}')
A(f's_cmp_eq_u32 {sNH}, 0'); A(f's_cbranch_scc1 {Lg}')
A.opt_end()
A(f'{Lge}:')
A(f'v_readfirstlane_b32 {sNL}, v{vNON}')
stamp('c0end')

vPK, vPKA = 20, 22
def c1_reads(n):
    s, p = divmod(n, 4); slot = s % 3; wb = vWB + 8 * (n % 3); t = f'c1r{n}'; o = slot * 16384
    A(f'ds_read_b64_tr_b16 {vr(wb,2)}, v{vU0+p} offset:{o}', tag=t)
    A(f'ds_read_b64_tr_b16 {vr(wb+2,2)}, v{vU0+p} offset:{o+768}', tag=t)
    A(f'ds_read_b64_tr_b16 {vr(wb+4,2)}, v{vU1A+p} offset:{o}', tag=t)
    A(f'ds_read_b64_tr_b16 {vr(wb+6,2)}, v{vU1B+p} offset:{o}', tag=t)
def c1_mfmas(n):
    p = n % 4; wb = vWB + 8 * (n % 3); x = vXF + 4 * n; z = n == 0
    if p == 0:
        A(f'v_mfma_f32_16x16x32_bf16 {vr(vCS0,4)}, {vr(vSEL,4)}, {vr(wb,4)}, {0 if z else vr(vCS0,4)}')
        A(f'v_mfma_f32_16x16x32_bf16 {vr(vCS1,4)}, {vr(vSEL,4)}, {vr(wb+4,4)}, {0 if z else vr(vCS1,4)}')
    A(f'v_mfma_f32_32x32x16_bf16 {vr(vAC0,16)}, {vr(wb,4)}, {vr(x,4)}, {0 if z else vr(vAC0,16)}')
    A(f'v_mfma_f32_32x32x16_bf16 {vr(vAC1,16)}, {vr(wb+4,4)}, {vr(x,4)}, {0 if z else vr(vAC1,16)}')
def rbp(d, dst):
    A(f's_add_u32 {dst}, {sRB}, {d}'); A(f's_cmp_ge_u32 {dst}, 2'); A(f's_cselect_b32 {dst}, {dst}, {sRB}')
    A(f's_cselect_b32 {sT5}, 2, 0'); A(f's_sub_u32 {dst}, {dst}, {sT5}')
def c1_hook(s):
    if s == 2:
        A.wait(vm='kvst'); publish(FK, t0)
    if s + 2 <= 7: dma_c1(s + 2)
    if s == 6:
        base_A(); dma_b(0, 6, 'bA')
    if s == 7:
        rbp(0, sT0); rbp(1, sT1)
        A(f'v_mov_b32 v{vPKA}, {sRB}'); A(f'v_writelane_b32 v{vPKA}, {sT0}, 0'); A(f'v_writelane_b32 v{vPKA}, {sT1}, 1')
        A(f's_and_b32 {sT0}, {sJ}, 14'); A(f's_add_u32 {sT0}, {sT0}, {sCT}'); A(f's_lshl_b32 {sT0}, {sT0}, 7')
        A(f's_and_b32 {sT1}, {sJ}, 1'); A(f's_lshl_b32 {sT1}, {sT1}, 2'); A(f's_add_u32 {sT1}, {sT1}, {sRT}'); A(f's_lshl_b32 {sT1}, {sT1}, 3')
        A(f's_add_u32 {sT0}, {sT0}, {sT1}'); A(f's_add_u32 {sT0}, {sT0}, {FK}')
        A(f'v_lshlrev_b32 v{vPKA}, 11, v{vPKA}'); A(f'v_add_u32 v{vPKA}, {sT0}, v{vPKA}')
        poll_issue(vPKA, vPK, 'kvpoll')
    if s == 8:
        poll_finish(vPKA, vPK, 'kvpoll')
        stamp('kvready')
        A(f's_lshl_b32 {sT3}, {sCT}, 21'); A(f's_lshl_b32 {sT0}, {sJ}, 17'); A(f's_add_u32 {sT3}, {sT3}, {sT0}'); A(f's_lshl_b32 {sT0}, {sRT}, 10'); A(f's_add_u32 {sT3}, {sT3}, {sT0}')
        A(f's_mul_i32 {sT4}, {sCT}, {24*K1}'); A(f's_add_u32 {sT4}, {sT4}, {sT0}')
        for d in range(3):
            if d < 2: rbp(d, sT1)
            else: A(f's_mov_b32 {sT1}, {sRB}')
            A(f's_lshl_b32 {sT1}, {sT1}, 12'); A(f's_add_u32 {sT1}, {sT1}, {sT3}'); A(f's_add_u32 {sT2}, {sT1}, 65536')
            A(f's_add_u32 m0, {sT4}, {d*4096}'); A('s_nop 0'); dma(vL16, S_WS, sT1, 0, tag='kv', sc1=True)
            A(f's_add_u32 m0, {sT4}, {d*4096+12*K1}'); A('s_nop 0'); dma(vL16, S_WS, sT2, 0, tag='kv', sc1=True)
        base_lin(L_BB, 12 * K1); dma_b(6, 12, 'bB')
    stamp(f'c1b{s}')
def c1_prelast():
    A(f'v_and_b32 v{t0}, 31, v0')
    A(f's_lshl_b32 {sT0}, {sCT}, 10'); A(f's_lshl_b32 {sT1}, {sRT}, 2'); A(f's_add_u32 {sT0}, {sT0}, {sT1}'); A(f's_add_u32 {sT0}, {sT0}, {L_SCOL1}')
    A(f'v_lshl_add_u32 v{t2}, v{t0}, 4, {sT0}')
    A(f'ds_write_b32 v{t2}, v{vCS0}', tag='st'); A(f'ds_write_b32 v{t2}, v{vCS1} offset:512', tag='st')
def c1_lastreads():
    A(f's_lshl_b32 {sT1}, {sRT}, 2'); A(f'v_subrev_u32 v{t2}, {sT1}, v{t2}')
    A(f'ds_read_b128 {vr(vCS0,4)}, v{t2}', tag='str1'); A(f'ds_read_b128 {vr(vCS1,4)}, v{t2} offset:512', tag='str1')
kloop('c1', c1_reads, c1_mfmas, c1_hook, c1_prelast, c1_lastreads)

A.wait(lg='str1', vm='b1')
feat_frag(vF, vCS0, vB1); feat_frag(vF + 4, vCS1, vB1 + 1)
A('s_nop 0')
A(f'v_mfma_f32_32x32x16_bf16 {vr(vAC0,16)}, {vr(vF,4)}, {vr(vT,4)}, {vr(vAC0,16)}')
A(f'v_mfma_f32_32x32x16_bf16 {vr(vAC1,16)}, {vr(vF+4,4)}, {vr(vT,4)}, {vr(vAC1,16)}')
def gelu_store(acc, tmp, soff):
    for g in range(2):
        a = acc + 8 * g
        for r in range(8): A(f'v_mul_f32 v{tmp+r}, v{a+r}, v{a+r}')
        for r in range(8): A(f'v_fma_f32 v{tmp+r}, v{tmp+r}, v{vK1}, v{vK0}')
        for r in range(8): A(f'v_mul_f32 v{tmp+r}, v{tmp+r}, v{a+r}')
        for r in range(8): A(f'v_exp_f32 v{tmp+r}, v{tmp+r}')
        for r in range(8): A(f'v_fma_f32 v{tmp+r}, v{tmp+r}, v{vIRR}, v{vIRR}')
        for r in range(8): A(f'v_rcp_f32 v{tmp+r}, v{tmp+r}')
        for r in range(8): A(f'v_mul_f32 v{a+r}, v{tmp+r}, v{a+r}')
        for r in range(4): A(f'v_cvt_pk_bf16_f32 v{a+r}, v{a+2*r}, v{a+2*r+1}')
        A(f'buffer_store_dwordx4 {vr(a,4)}, v{vL16}, {S_WS}, {soff} offen{" offset:1024" if g else ""} sc1', tag='hst')
A(f's_mul_i32 {sT2}, {sTMAX}, 86'); A(f's_add_u32 {sT0}, {sTS}, {sCT}'); A(f's_lshl_b32 {sT0}, {sT0}, 1'); A(f's_add_u32 {sT0}, {sT0}, {sT2}')
A(f's_lshl_b32 {sT0}, {sT0}, 10'); A(f's_add_u32 {sT0}, {sT0}, {HF}'); A(f's_add_u32 {sT1}, {sT0}, 2048')
A('s_nop 3')
gelu_store(vAC0, vWB, sT0)
Lqe, Lee = A.label('qe'), A.label('ee')
A(f's_cmp_eq_u32 {sCT}, 0'); A(f's_cbranch_scc1 {Lqe}')
A(f's_cmp_ge_u32 {sJ}, 11'); A(f's_cbranch_scc1 {Lee}')
A.opt_begin()
gelu_store(vAC1, vWB, sT1)
A(f's_branch {Lee}')
A.opt_end()
A(f'{Lqe}:')
A.opt_begin()
A(f'v_mul_f32 v{vR1}, {f32(0.25*1.4426950408889634)}, v{vR1}')
A(f's_lshl_b32 {sT0}, {sRT}, 10'); A(f's_add_u32 {sT0}, {sT0}, {L_QX}'); A(f'v_add_u32 v{t0}, {sT0}, v{vL16}')
for r in range(16): A(f'v_mul_f32 v{vAC1+r}, v{vR1}, v{vAC1+r}')
for r in range(4): A(f'v_cvt_pk_bf16_f32 v{vQ+r}, v{vAC1+2*r}, v{vAC1+2*r+1}')
for r in range(4): A(f'v_cvt_pk_bf16_f32 v{vAC1+r}, v{vAC1+8+2*r}, v{vAC1+8+2*r+1}')
A(f'ds_write_b128 v{t0}, {vr(vAC1,4)}', tag='qx')
A.opt_end()
A(f'{Lee}:')
stamp('gelu')

A(f's_mul_i32 {sT0}, {sCT}, {12*K1}'); A(f's_lshl_b32 {sT1}, {sRT}, 10'); A(f's_add_u32 {sT0}, {sT0}, {sT1}')
A(f'v_add_u32 v{vKA}, {sT0}, v{vL16}')
A(f'v_add_u32 v{vBIA}, {L_BIAS}, v{vL16}')
tr_lane_parts(20, 21, 22, 23, 24)
A('v_lshrrev_b32 v25, 5, v0')
vLB4, vLB5 = 26, 27
A(f's_lshl_b32 {sT1}, {sCH}, 6'); A(f'v_xor_b32 v23, {sT1}, v23')
A(f'v_lshl_add_u32 v24, v25, 2, v20'); A(f'v_lshl_add_u32 v{vLB4}, v24, 7, v23'); A(f'v_lshl_add_u32 v{vLB5}, v25, 9, v{vLB4}')
A(f'v_lshlrev_b32 v23, 7, v25'); A('v_lshl_add_u32 v23, v20, 5, v23'); A('v_lshl_add_u32 v23, v21, 3, v23')
A(f's_add_u32 {sT0}, {sT0}, {24*K1+8*K1}'); A(f'v_add_u32 v23, {sT0}, v23')
A('v_and_b32 v24, 15, v0'); A('v_lshlrev_b32 v24, 3, v24'); A('v_xor_b32 v25, 1, v25'); A('v_lshl_add_u32 v24, v25, 7, v24'); A(f'v_add_u32 v24, {L_ONES}, v24')
A('v_cmp_eq_u32 vcc, 0, v22'); A(f'v_mov_b32 v25, {-1024 & 0xffffffff}'); A('s_nop 0')
A(f'v_cndmask_b32 v{vVA}, v24, v23, vcc'); A(f'v_cndmask_b32 v{vVST}, 0, v25, vcc')
A.wait(vm='bB', lg=0); A('s_barrier')
stamp('p1end')
Lq1 = A.label('q1')
A(f's_cmp_eq_u32 {sCT}, 0'); A(f's_cbranch_scc1 {Lq1}')
A.opt_begin()
A(f's_lshl_b32 {sT0}, {sRT}, 10'); A(f's_add_u32 {sT0}, {sT0}, {L_QX}'); A(f'v_add_u32 v{t0}, {sT0}, v{vL16}')
A(f'ds_read_b128 {vr(vQ,4)}, v{t0}', tag='qr')
A.opt_end()
A(f'{Lq1}:')
def Sb(t): return vS0 + 16 * (t & 1)
def k_read(t): A(f'ds_read_b128 {vr(vKB+4*(t&1),4)}, v{vKA} offset:{(8-t)*1024}', tag=f'k{t}')
def v_read(t):
    vb = vVB + 8 * (t & 1)
    for q in range(4): A(f'ds_read_b64_tr_b16 {vr(vb+2*q,2)}, v{vVA} offset:{q*256}', tag=f'v{t}')
def bias_read(tab, dst, tag):
    for g in range(4): A(f'ds_read_b128 {vr(dst+4*g,4)}, v{vBIA} offset:{(tab*4+g)*1024}', tag=tag)
def b_reads(b0, b1, first, tag, dst=None):
    A(f'v_add_u32 v{t0}, {sT4}, v{vLB4}'); A(f'v_add_u32 v{t1}, {sT4}, v{vLB5}')
    for bb in range(b0, b1):
        d = (vBF + 4 * bb) if dst is None else dst + 4 * (bb - b0)
        a, o2 = (t0, 1024) if bb < 22 else (t1, 512)
        A(f'ds_read_b64_tr_b16 {vr(d,2)}, v{a} offset:{(bb-first)*2048}', tag=tag)
        A(f'ds_read_b64_tr_b16 {vr(d+2,2)}, v{a} offset:{(bb-first)*2048+o2}', tag=tag)
k_read(0); bias_read(0, Sb(0), 'k0'); k_read(1); v_read(0)
A.wait(lg='k0')
A(f'v_mfma_f32_32x32x16_bf16 {vr(Sb(0),16)}, {vr(vKB,4)}, {vr(vQ,4)}, {vr(Sb(0),16)}')
base_A(); b_reads(0, 6, 0, 'bra')
def tile(t):
    cur, nxt = Sb(t), Sb(t + 1); vb = vVB + 8 * (t & 1)
    if t < 8:
        A(f'v_add_u32 v{vVA}, v{vVA}, v{vVST}')
        if t == 7: bias_read(1, nxt, 'k8')
        v_read(t + 1)
    for r in range(8): A(f'v_exp_f32 v{cur+r}, v{cur+r}')
    if t < 8:
        A.wait(lg=f'k{t+1}')
        A(f'v_mfma_f32_32x32x16_bf16 {vr(nxt,16)}, {vr(vKB+4*((t+1)&1),4)}, {vr(vQ,4)}, {vr(nxt,16) if t == 7 else 0}')
        if t < 7: k_read(t + 2)
    else: A('s_nop 0')
    for r in range(4): A(f'v_cvt_pk_bf16_f32 v{vP+r}, v{cur+2*r}, v{cur+2*r+1}')
    for r in range(8, 12): A(f'v_exp_f32 v{cur+r}, v{cur+r}')
    A.wait(lg=f'v{t}')
    A(f'v_mfma_f32_32x32x16_bf16 {vr(vO,16)}, {vr(vb,4)}, {vr(vP,4)}, {0 if t == 0 else vr(vO,16)}')
    for r in range(12, 16): A(f'v_exp_f32 v{cur+r}, v{cur+r}')
    for r in range(4): A(f'v_cvt_pk_bf16_f32 v{vP+4+r}, v{cur+8+2*r}, v{cur+8+2*r+1}')
    A('s_nop 1')
    A(f'v_mfma_f32_32x32x16_bf16 {vr(vO,16)}, {vr(vb+4,4)}, {vr(vP+4,4)}, {vr(vO,16)}')
tile(0)
base_lin(L_BB, 12 * K1); b_reads(6, 12, 6, 'brb')
first = True
for t in range(1, 9):
    Ls = A.label('skip')
    A(f's_cmp_lt_u32 {sTMAX}, {t}'); A(f's_cbranch_scc1 {Ls}')
    if not first: A.opt_resume_chain()
    A.opt_begin(chain=True); first = False
    tile(t)
    A.opt_end(chain=True)
    A(f'{Ls}:')
    if t == 1:
        ch = set(A._chain)
        A.wait(lg=0); A('s_barrier')
        A.wait(vm='hst'); publish(FH, t0)
        base_lin(L_BC, 24 * K1); dma_b(12, 24, 'bC')
        A._chain = ch
    stamp(f'tile{t}')
A.wait(lg=0)
A(f's_lshl_b32 {sT2}, {sTMAX}, 5'); A(f's_lshl_b32 {sT0}, {sJ}, 1'); A(f's_add_u32 {sT2}, {sT2}, {sT0}'); A(f's_add_u32 {sT2}, {sT2}, {sCT}')
A(f's_lshl_b32 {sT2}, {sT2}, 10'); A(f's_add_u32 {sT2}, {sT2}, {OF}')
A(f's_mov_b32 {sT0}, {f32(2.0**-64) if not FORCE_FB else f32(2.0**100)}'); A(f's_mov_b32 {sT1}, {f32(2.0**64)}'); A('s_nop 3')
A(f'v_cmp_le_f32 vcc, {sT0}, v{vO+8}'); A(f'v_cmp_ge_f32 {sCMP}, {sT1}, v{vO+8}')
A(f's_and_b64 vcc, vcc, {sCMP}'); A('s_cmp_eq_u64 vcc, -1'); A('s_cbranch_scc0 L_fallback')
A('L_attfin:')
A(f'v_rcp_f32 v{t0}, v{vO+8}'); A('s_nop 0')
for r in range(8): A(f'v_mul_f32 v{vO+r}, v{t0}, v{vO+r}')
for r in range(4): A(f'v_cvt_pk_bf16_f32 v{vP+r}, v{vO+2*r}, v{vO+2*r+1}')
A(f'buffer_store_dwordx4 {vr(vP,4)}, v{vL16}, {S_WS}, {sT2} offen sc1', tag='ost')
stamp('ost')

vPD = 14
A(f's_lshl_b32 {sT0}, {sU}, 1'); A(f's_add_u32 {sT0}, {sT0}, {sCH}')
A(f's_lshr_b32 {sT1}, {sT0}, 2'); A(f's_lshl_b32 {sT1}, {sT1}, 11'); A(f's_and_b32 {sT2}, {sT0}, 3'); A(f's_lshl_b32 {sT2}, {sT2}, 3'); A(f's_add_u32 {sT1}, {sT1}, {sT2}')
sHO, sOO, sFB = 's12', 's13', 's14'
A(f's_mov_b32 {sFB}, {sT1}')
A(f's_mul_i32 {sHO}, {sT0}, 86'); A(f's_add_u32 {sHO}, {sHO}, {sGS}'); A(f's_lshl_b32 {sHO}, {sHO}, 10'); A(f's_add_u32 {sHO}, {sHO}, {HF}')
A(f's_lshl_b32 {sOO}, {sT0}, 5'); A(f's_lshl_b32 {sT2}, {sKQ}, 3'); A(f's_add_u32 {sOO}, {sOO}, {sT2}'); A(f's_lshl_b32 {sOO}, {sOO}, 10'); A(f's_add_u32 {sOO}, {sOO}, {OF}')
A(f'v_bfe_u32 v{t0}, v0, 1, 4'); A(f'v_and_b32 v{t1}, 1, v0'); A(f'v_lshlrev_b32 v{t0}, 7, v{t0}'); A(f'v_lshl_add_u32 v{t0}, v{t1}, 5, v{t0}')
A(f's_add_u32 {sT1}, {sFB}, {FH}'); A(f'v_add_u32 v{vPOL}, {sT1}, v{t0}')
poll_issue(vPOL, vPD, 'hpoll')
A.wait(vm='bC'); A('s_barrier')
stamp('t3end')
base_lin(L_BC, 24 * K1); b_reads(12, 24, 12, 'brc')
A(f's_lshl_b32 {sT0}, {sKQ}, 13'); A(f'v_add_u32 v{vAA}, {sT0}, v{vL16}'); A(f'v_add_u32 v{vAA2}, 0x10000, v{vAA}')
A.wait(vm='ost'); publish(FO, 13)
poll_finish(vPOL, vPD, 'hpoll')
stamp('hready')
SB = [0, 4, 8, 12, 16, 20, 22, 26, 30]
def dma_a(u):
    slot = u % 3
    A(f's_lshl_b32 {sT0}, {sKQ}, 13'); A(f's_lshl_b32 {sT1}, {sCH}, 12'); A(f's_add_u32 {sT0}, {sT0}, {sT1}'); A(f's_add_u32 m0, {sT0}, {slot*32768}')
    if u < 6: A(f's_add_u32 {sT0}, {sHO}, {u*4096}')
    else: A(f's_add_u32 {sT0}, {sOO}, {(u-6)*4096}')
    for q in range(SB[u + 1] - SB[u]): dma(vL16, S_WS, sT0, q * 1024, tag=f'a{u}', sc1=True)
dma_a(0)
vROW = 16
A(f'v_lshrrev_b32 v{t0}, 4, v0'); A(f'v_bfe_u32 v{t1}, v0, 3, 1'); A(f'v_lshl_add_u32 v{t0}, v{t1}, 2, v{t0}')
A(f'v_and_b32 v{t1}, 7, v0'); A(f'v_lshlrev_b32 v{t1}, 4, v{t1}'); A(f'v_lshl_add_u32 v{vROW}, v{t0}, 10, v{t1}')
sOUT = 's15'
A(f's_lshl_b32 {sOUT}, {sU}, 16'); A(f's_lshl_b32 {sT0}, {sW}, 13'); A(f's_add_u32 {sOUT}, {sOUT}, {sT0}'); A(f's_lshl_b32 {sT0}, {sV}, 7'); A(f's_add_u32 {sOUT}, {sOUT}, {sT0}')
mk_srd(S_B, 26, 1024)
A(f'buffer_load_dwordx4 {vr(vXR,4)}, v{vROW}, {S_X}, {sOUT} offen', tag='xr')
A(f'buffer_load_dwordx4 {vr(vB2,4)}, v{t1}, {S_B}, {sT0} offen', tag='xr')
A.wait(lg=0); A('s_barrier')
dma_a(1); dma_a(2)
base_lin(L_BD, 12 * K1); dma_b(24, 30, 'bD')
def stage_of(mm): return max(u for u in range(8) if SB[u] <= mm)
def a_reads(mm):
    u = stage_of(mm); slot = u % 3; ab = vAB + 8 * (mm % 3); q = mm - SB[u]
    a, o = (vAA, slot * 32768) if slot < 2 else (vAA2, 0)
    A(f'ds_read_b128 {vr(ab,4)}, v{a} offset:{o + q*1024}', tag=f'ar{mm}')
    A(f'ds_read_b128 {vr(ab+4,4)}, v{a} offset:{o + 4096 + q*1024}', tag=f'ar{mm}')
def a_mfmas(mm):
    ab = vAB + 8 * (mm % 3); bf = (vBF + 4 * mm) if mm < 24 else (vBD + 4 * (mm - 24)); z = mm == 0
    if mm == 21:
        Lk = A.label('k21'); A(f's_cmp_ge_u32 {sKQ}, 2'); A(f's_cbranch_scc1 {Lk}'); A.opt_begin()
    A(f'v_mfma_f32_32x32x16_bf16 {vr(vAC0,16)}, {vr(ab,4)}, {vr(bf,4)}, {0 if z else vr(vAC0,16)}')
    A(f'v_mfma_f32_32x32x16_bf16 {vr(vAC1,16)}, {vr(ab+4,4)}, {vr(bf,4)}, {0 if z else vr(vAC1,16)}')
    if mm == 21: A.opt_end(); A(f'{Lk}:')
A.wait(vm='a0'); A('s_barrier')
stamp('a0')
a_reads(0); a_reads(1)
for mm in range(29):
    if mm + 2 in SB:
        u = SB.index(mm + 2)
        A.wait(lg=0); a_mfmas(mm)
        if u < 8: A.wait(vm=f'a{u}')
        A('s_barrier')
        if u < 8: a_reads(mm + 2)
        else: a_mfmas(29)
        if u == 3:
            base_lin(L_BD, 12 * K1); b_reads(24, 30, 24, 'brd', dst=vBD)
            A(f'v_bfe_u32 v{t0}, v0, 1, 2'); A(f'v_and_b32 v{t1}, 1, v0'); A(f'v_lshlrev_b32 v{t0}, 7, v{t0}'); A(f'v_lshl_add_u32 v{t0}, v{t1}, 5, v{t0}')
            A(f's_lshl_b32 {sT0}, {sKQ}, 9'); A(f's_add_u32 {sT0}, {sT0}, {sFB}'); A(f's_add_u32 {sT0}, {sT0}, {FO}'); A(f'v_add_u32 v{vPOL}, {sT0}, v{t0}')
        if u == 4:
            poll_finish(vPOL, vPD, 'opoll'); stamp('oready')
        if u + 2 <= 7: dma_a(u + 2)
        if u == 3: poll_issue(vPOL, vPD, 'opoll')
        stamp(f'a{u}')
    else:
        a_reads(mm + 2)
        A.wait(lg=f'ar{mm}'); a_mfmas(mm)
A(f's_mul_i32 {sT0}, {sW}, {32*REDP}'); A(f's_mov_b32 m0, {sT0}')
A(f'v_lshrrev_b32 v{t0}, 4, v0'); A(f's_lshl_b32 {sT0}, {sW}, 2'); A(f'v_add_u32 v{t0}, {sT0}, v{t0}'); A(f'v_mul_u32_u24 v{t0}, {REDP}, v{t0}')
A(f'v_bfe_u32 v{t1}, v0, 3, 1'); A(f'v_lshl_add_u32 v{t0}, v{t1}, 7, v{t0}')
A(f'v_and_b32 v{t1}, 3, v0'); A(f'v_lshl_add_u32 v{t0}, v{t1}, 5, v{t0}')
A(f'v_bfe_u32 v{t1}, v0, 2, 1'); A(f'v_mul_u32_u24 v{t1}, {32*REDP}, v{t1}'); A(f'v_add_u32 v{t0}, v{t0}, v{t1}')
A('s_nop 0')
for r in range(32): A(f'ds_write_addtid_b32 v{vAC0+r} offset:{r*REDP}', tag='red')
A.wait(lg=0); A('s_barrier')
vR = 160
for q in range(4):
    A(f'ds_read_b128 {vr(vR+8*q,4)}, v{t0} offset:{q*64*REDP}', tag=f'rr{q}'); A(f'ds_read_b128 {vr(vR+8*q+4,4)}, v{t0} offset:{q*64*REDP+16}', tag=f'rr{q}')
A.wait(vm='xr')
vE = 200
for r in range(4):
    A(f'v_lshlrev_b32 v{vE+2*r}, 16, v{vXR+r}'); A(f'v_and_b32 v{vE+2*r+1}, 0xffff0000, v{vXR+r}')
    A(f'v_lshlrev_b32 v{vE+8+2*r}, 16, v{vB2+r}'); A(f'v_and_b32 v{vE+8+2*r+1}, 0xffff0000, v{vB2+r}')
for r in range(8): A(f'v_add_f32 v{vE+r}, v{vE+r}, v{vE+8+r}')
for q in range(4):
    A.wait(lg=f'rr{q}')
    for r in range(8): A(f'v_add_f32 v{vE+r}, v{vE+r}, v{vR+8*q+r}')
for r in range(4): A(f'v_cvt_pk_bf16_f32 v{vE+r}, v{vE+2*r}, v{vE+2*r+1}')
A(f'buffer_store_dwordx4 {vr(vE,4)}, v{vROW}, {S_OUT}, {sOUT} offen', tag='out')
if STAMPS:
    stamp('end')
    A(f's_lshl_b32 {sT0}, s2, 3'); A(f's_add_u32 {sT0}, {sT0}, {sW}'); A(f's_lshl_b32 {sT0}, {sT0}, 8'); A(f's_add_u32 {sT0}, {sT0}, {ST}')
    A(f's_memrealtime {sSTMP}'); A('s_waitcnt lgkmcnt(0)'); A(f'v_writelane_b32 v{vSTMP}, s96, 63')
    A(f'v_lshlrev_b32 v{t0}, 2, v0'); A(f'buffer_store_dword v{vSTMP}, v{t0}, {S_WS}, {sT0} offen')
A('L_end:')
A('s_endpgm')
main = list(A.ins)

B = Asm(); B.nlabel = 1000
vKA2, vM, vVA2 = 128, 129, 130
S0, S1 = vS0, vS0 + 16
B('L_fallback:')
B(f's_min_u32 {sT4}, {sTMAX}, 8')
def fb_scores(tagp):
    L1, L2, L3 = B.label('fb'), B.label('fb'), B.label('fb')
    B(f'ds_read_b128 {vr(vKB,4)}, v{vKA2}'); B('s_waitcnt lgkmcnt(0)')
    B(f'v_mfma_f32_32x32x16_bf16 {vr(S0,16)}, {vr(vKB,4)}, {vr(vQ,4)}, 0')
    B(f's_and_b32 {sT1}, {sT0}, 7'); B(f's_cmp_lg_u32 {sT1}, 0'); B('s_nop 15'); B(f's_cbranch_scc1 {L1}')
    B(f's_lshl_b32 {sT1}, {sT0}, 9'); B(f'v_add_u32 v{vM+2}, {sT1}, v{vBIA}')
    for g in range(4): B(f'ds_read_b128 {vr(S1+4*g,4)}, v{vM+2} offset:{g*1024}')
    B('s_waitcnt lgkmcnt(0)')
    for r in range(16): B(f'v_add_f32 v{S0+r}, v{S0+r}, v{S1+r}')
    B(f'{L1}:')
B(f's_mov_b32 {sT0}, 0'); B(f'v_add_u32 v{vKA2}, 8192, v{vKA}'); B(f'v_mov_b32 v{vM}, {f32(-3e38)}')
La = B.label('fa'); B(f'{La}:')
fb_scores('a')
for r in range(8): B(f'v_max3_f32 v{vM}, v{vM}, v{S0+2*r}, v{S0+2*r+1}')
B(f'v_subrev_u32 v{vKA2}, 1024, v{vKA2}'); B(f's_add_u32 {sT0}, {sT0}, 1'); B(f's_cmp_le_u32 {sT0}, {sT4}'); B(f's_cbranch_scc1 {La}')
B(f'v_mov_b32 v{vM+3}, v{vM}'); B('s_nop 1'); B(f'v_permlane32_swap_b32 v{vM}, v{vM+3}'); B(f'v_max_f32 v{vM}, v{vM}, v{vM+3}')
B(f's_min_u32 {sT1}, {sTMAX}, 7'); B(f's_add_u32 {sT1}, {sT1}, 1'); B(f'v_mul_lo_u32 v{vVA2}, v{vVST}, {sT1}'); B(f'v_sub_u32 v{vVA2}, v{vVA}, v{vVA2}')
B(f's_mov_b32 {sT0}, 0'); B(f'v_add_u32 v{vKA2}, 8192, v{vKA}')
for r in range(16): B(f'v_mov_b32 v{vO+r}, 0')
Lb = B.label('fbb'); B(f'{Lb}:')
for q in range(4): B(f'ds_read_b64_tr_b16 {vr(vVB+2*q,2)}, v{vVA2} offset:{q*256}')
fb_scores('b')
for r in range(16): B(f'v_sub_f32 v{S0+r}, v{S0+r}, v{vM}')
for r in range(16): B(f'v_exp_f32 v{S0+r}, v{S0+r}')
B('s_nop 0')
for r in range(8): B(f'v_cvt_pk_bf16_f32 v{vP+r}, v{S0+2*r}, v{S0+2*r+1}')
B('s_nop 1')
B(f'v_mfma_f32_32x32x16_bf16 {vr(vO,16)}, {vr(vVB,4)}, {vr(vP,4)}, {vr(vO,16)}')
B(f'v_mfma_f32_32x32x16_bf16 {vr(vO,16)}, {vr(vVB+4,4)}, {vr(vP+4,4)}, {vr(vO,16)}')
B(f'v_subrev_u32 v{vKA2}, 1024, v{vKA2}'); B(f'v_add_u32 v{vVA2}, v{vVA2}, v{vVST}')
B(f's_add_u32 {sT0}, {sT0}, 1'); B(f's_cmp_le_u32 {sT0}, {sT4}'); B(f's_cbranch_scc1 {Lb}')
B('s_nop 15'); B('s_branch L_attfin')
B('L_codeend:')

probs = check(main, True) + check(main, False) + check(B.ins, True)
for p in dict.fromkeys(probs): print(p, file=sys.stderr)

hdr = open('parallel_sum__sliding_block__mixer_channel_mlp__prompt.s.ref').read().split('; Override launch')[0]
text = hdr + f'''; @launch grid=(256,1,1) block=(512,1,1) lds={LDS_BYTES}
.amdgcn_target "amdgcn-amd-amdhsa--gfx950"
.text
.globl {NAME}
.p2align 8
.type {NAME},@function
{NAME}:
''' + A.text() + '\n' + B.text() + f'''
s_endpgm
.section .rodata,"a"
.p2align 6
.amdhsa_kernel {NAME}
  .amdhsa_next_free_vgpr 256
  .amdhsa_next_free_sgpr 102
  .amdhsa_accum_offset 256
  .amdhsa_group_segment_fixed_size 0
  .amdhsa_kernarg_size 88
  .amdhsa_user_sgpr_count 2
  .amdhsa_user_sgpr_kernarg_segment_ptr 1
  .amdhsa_system_sgpr_workgroup_id_x 1
  .amdhsa_float_denorm_mode_32 3
.end_amdhsa_kernel
'''
open(OUT, 'w').write(text)
if STAMPS: open(OUT + '.stamps', 'w').write('\n'.join(stamp_names))
print('instructions', len(main) + len(B.ins), 'problems', len(probs))
```

```python
import sys, struct
from asmk import Asm, check

NAME = "parallel_sum__sliding_block__mixer_channel_mlp__prompt_kernel"
OUT = sys.argv[1]
def flag(n): return n in sys.argv
def opt(n, d): return int(sys.argv[sys.argv.index(n) + 1]) if n in sys.argv else d
STAMPS, FORCE_FB, NOPF, NOROT, FEWST = map(flag, ('--stamps', '--force-fallback', '--nopf', '--norot', '--fewstamps'))
BA_AT, KV_AT, MAPUV, MAPP1, PUBK = opt('--ba', 1), opt('--kv', 6), opt('--mapuv', 0), opt('--mapp1', 0), opt('--pubk', 2)
def f32(x): return '0x%08x' % struct.unpack('<I', struct.pack('<f', x))[0]

KF, VF, OF, HF, FL = 0, 2 << 20, 4 << 20, 6 << 20, 12 << 20
FK, FH, FO = 0, 64, 128
ST = 13 << 20
WS_SIZE = 14 << 20
K1 = 1024
L_X, L_W0, L_C1 = 0, 64 * K1, 96 * K1
L_BIAS, L_SROW, L_SCOL1, L_ONES, L_SCOL0, L_QX = 144 * K1, 152 * K1, 152 * K1, 154 * K1, 155 * K1, 156 * K1
L_RA, L_RB = 48 * K1, 96 * K1
LDS_BYTES = 160 * K1
REDP = 272
S_X, S_WQ, S_W2, S_WO, S_WS, S_OUT, S_C1, S_B, S_DBG = [f's[{b}:{b+3}]' for b in range(28, 64, 4)]
def srd(name): return int(name[2:name.index(':')])
(sW, sRB, sJ, sRT, sCT, sSW, sTS, sU, sV, sKQ, sCH, sTMAX, sSPIN, sKB, sC1M, sM11, sM10, sFLG,
 sT0, sT1) = [f's{i}' for i in range(64, 84)]
sNON = 's[84:85]'; sNL, sNH = 's84', 's85'
sT2, sT3, sT4, sD0, sBO, sBS, sBE, sWOO, sBL, sHO = [f's{i}' for i in range(86, 96)]
sSTMP = 's[96:97]'; sST0 = 's[98:99]'; sHS, sHE = 's100', 's101'
sM1, sM2, sM3, sCMP = 's[4:5]', 's[6:7]', 's[8:9]', 's[10:11]'
sKV0, sKV1, sKV2, sKVL, sOO, sOB, sOUT, sOST, sHST = 's12', 's13', 's14', 's15', 's16', 's17', 's18', 's19', 's20'
sA0, sA1, sA2 = 's21', 's22', 's23'
def vr(b, n=1): return f'v{b}' if n == 1 else f'v[{b}:{b+n-1}]'
vL16, vBDMA, vSTMP, vNON = 1, 2, 3, 4
t0, t1, t2 = 6, 7, 8
vK0, vK1, vIRR = 9, 10, 11
vXD0, vXD1, vWD, vC1D0, vC1D1, vB1, vR1 = 12, 13, 14, 15, 16, 17, 19
vXA, vWA, vU0, vU1A, vU1B, vT, vF, vSEL, vCS0, vCS1, vRS, vSQ, vWB = 20, 24, 28, 32, 36, 40, 44, 52, 56, 60, 64, 68, 72
vAC0, vAC1, vXF = 96, 112, 128
vPKA, vPHA, vPOA, vLB4, vLB5, vKA, vVA, vVST = 20, 21, 22, 23, 24, 25, 26, 27
vL16B, vROW, vRED = 12, 13, 14
vPK = 64
vBIA = 28
vQ, vKB, vVB, vS0, vP, vO = 44, 48, 56, 72, 104, 112
vBF = 160
vCB = 136
vAS = [29, 30, 31]; vPD = 32
vAB, vBD, vXR, vB2, vE = 72, 128, 152, 156, 36

A = Asm()
nstamp = [0]; stamp_names = []
ONLY = sys.argv[sys.argv.index('--only') + 1].split(',') if '--only' in sys.argv else None
POOL = [96, 24, 0]; PEND = []
def harvest():
    for pair, idx in PEND:
        A(f's_sub_u32 s{pair}, s{pair}, s98'); A(f'v_writelane_b32 v{vSTMP}, s{pair}, {idx}'); POOL.append(pair)
    PEND.clear()
def stamp(name, force=False):
    if not STAMPS or (ONLY and name not in ONLY and name != 'end'): return
    early = name in ('karg', 'dma1')
    if not POOL or (early and PEND): A('s_waitcnt lgkmcnt(0)'); harvest()
    pair = 96 if early else POOL[-1]
    POOL.remove(pair)
    A(f's_mem{"real" if flag("--rt") else ""}time s[{pair}:{pair+1}]'); PEND.append((pair, nstamp[0]))
    nstamp[0] += 1; stamp_names.append(name)
    if force or early: A('s_waitcnt lgkmcnt(0)'); harvest()
_wait = A.wait
def wait2(vm=None, lg=None):
    _wait(vm=vm, lg=lg)
    if lg == 0 and PEND and not A._opt: harvest()
A.wait = wait2
def mk_srd(name, plo, size):
    b = srd(name)
    A(f's_mov_b32 s{b}, s{plo}'); A(f's_and_b32 s{b+1}, s{plo+1}, 0xffff'); A(f's_mov_b32 s{b+2}, {size}'); A(f's_mov_b32 s{b+3}, 0x20000')
XA_NODMA, XA_NOBR, XA_NOBAR, XA_NOVM = map(flag, ('--xa-nodma', '--xa-nobr', '--xa-nobar', '--xa-novm'))
def dma(vaddr, srdn, soff, off=0, tag=None, sc1=False):
    if XA_NODMA and tag in ('bC1', 'bC2', 'bD'):
        A.vm.append((tag, 1 << 30)); return
    o = f' offset:{off}' if off else ''
    A(f'buffer_load_dwordx4 v{vaddr}, {srdn}, {soff} offen{o}{" sc1" if sc1 else ""} lds', tag=tag)
def poll_issue(vaddr, P, tag):
    A(f'buffer_load_dwordx2 {vr(P,2)}, v{vaddr}, {S_WS}, 0 offen sc1', tag=tag)
SPINS = []
def poll_finish(vaddr, P, tag):
    L = A.label('sp'); E = A.label('spe')
    A.wait(vm=tag)
    A(f'v_cmp_ne_u64 vcc, {sNON}, {vr(P,2)}')
    A(f's_cbranch_vccnz {L}')
    A(f'{E}:')
    SPINS.append((L, E, vaddr, P))
def publish(phase):
    A('s_mov_b64 exec, 1')
    A(f'buffer_store_dwordx2 {vr(vNON,2)}, off, {S_WS}, {sFLG} offset:{phase} sc1', tag='flag')
    A('s_mov_b64 exec, -1')
FILL = []; VF_ = []
def fill(n=1):
    for _ in range(n):
        if FILL: FILL.pop(0)()
def flush(): fill(len(FILL))
class Defer:
    def __call__(self, t): VF_.append(t)
D = Defer()
def vfill(n):
    for _ in range(n):
        if VF_: A(VF_.pop(0))
def vflush(): vfill(len(VF_))

if STAMPS: A(f's_mem{"real" if flag("--rt") else ""}time {sST0}'); A('s_memrealtime s[100:101]')
if opt('--deadline', 0): A('s_memrealtime s[2:3]' if False else 's_memrealtime s[98:99]')
A('s_load_dwordx16 s[4:19], s[0:1], 0'); A('s_load_dwordx4 s[20:23], s[0:1], 64'); A('s_load_dwordx2 s[24:25], s[0:1], 80')
A('s_cmp_ge_u32 s2, 256'); A('s_cbranch_scc1 L_end')
A('v_lshrrev_b32 v1, 6, v0'); A('v_and_b32 v0, 63, v0'); A(f'v_readfirstlane_b32 {sW}, v1')
A(f's_and_b32 {sT0}, s2, 7'); A(f's_lshr_b32 {sT1}, s2, 3')
vPF = 100
if not NOPF:
    b = srd(S_B)
    A(f's_getpc_b64 s[{b}:{b+1}]'); A('L_pc:'); A(f's_and_b32 s{b+1}, s{b+1}, 0xffff'); A(f's_mov_b32 s{b+2}, L_codeend-L_pc'); A(f's_mov_b32 s{b+3}, 0x20000')
    A(f's_and_b32 {sT2}, {sT1}, 7'); A(f's_lshl_b32 {sT2}, {sT2}, 3'); A(f's_add_u32 {sT2}, {sT2}, {sW}'); A(f's_lshl_b32 {sT2}, {sT2}, 9')
    A(f'v_lshlrev_b32 v{vPF}, 7, v0')
    A('s_mov_b64 exec, 15')
    A(f'buffer_load_dword v{vPF}, v{vPF}, {S_B}, {sT2} offen', tag='pf')
    A('s_mov_b64 exec, -1')
if MAPP1 == 0:
    A(f's_and_b32 {sRB}, {sT0}, 1'); A(f's_lshl_b32 {sRB}, {sRB}, 3'); A(f's_and_b32 {sT2}, {sT1}, 7'); A(f's_add_u32 {sRB}, {sRB}, {sT2}')
    A(f's_lshr_b32 {sJ}, {sT0}, 1'); A(f's_lshl_b32 {sJ}, {sJ}, 2'); A(f's_lshr_b32 {sT3}, {sT1}, 3'); A(f's_add_u32 {sJ}, {sJ}, {sT3}')
    A(f's_lshl_b32 {sKB}, {sT3}, 1'); A(f's_add_u32 {sKB}, {sKB}, {sT2}')
else:
    A(f's_and_b32 {sRB}, {sT0}, 3'); A(f's_lshl_b32 {sRB}, {sRB}, 2'); A(f's_and_b32 {sT2}, {sT1}, 3'); A(f's_add_u32 {sRB}, {sRB}, {sT2}')
    A(f's_lshr_b32 {sJ}, {sT0}, 2'); A(f's_lshl_b32 {sJ}, {sJ}, 3'); A(f's_lshr_b32 {sT3}, {sT1}, 2'); A(f's_add_u32 {sJ}, {sJ}, {sT3}')
    A(f's_lshl_b32 {sKB}, {sT2}, 1'); A(f's_add_u32 {sKB}, {sKB}, {sT3}')
A(f's_and_b32 {sKB}, {sKB}, 7'); A(f's_lshl_b32 {sKB}, {sKB}, 7')
if STAMPS: A(f'v_mov_b32 v{vSTMP}, 0'); A('s_waitcnt lgkmcnt(0)'); A(f'v_writelane_b32 v{vSTMP}, s100, 62'); A('s_getreg_b32 s100, hwreg(HW_REG_XCC_ID)'); A(f'v_writelane_b32 v{vSTMP}, s100, 61'); A('s_getreg_b32 s100, hwreg(HW_REG_HW_ID)'); A(f'v_writelane_b32 v{vSTMP}, s100, 60')
A('v_lshrrev_b32 v72, 3, v0'); A('v_lshrrev_b32 v73, 4, v0'); A('v_and_b32 v74, 7, v0')
A('v_xor_b32 v75, v74, v73'); A('v_lshlrev_b32 v75, 4, v75'); A(f'v_lshl_add_u32 v{vXD0}, v72, 10, v75')
A(f's_lshl_b32 {sT2}, {sRB}, 17'); A(f's_lshl_b32 {sT3}, {sW}, 14'); A(f's_add_u32 {sT2}, {sT2}, {sT3}'); A(f'v_add_u32 v{vXD0}, {sT2}, v{vXD0}')
A(f'v_xor_b32 v{vXD1}, 64, v{vXD0}'); A(f'v_add_u32 v{vXD1}, {8192-1024}, v{vXD1}')
A('v_and_b32 v73, 1, v73'); A('v_lshlrev_b32 v73, 2, v73'); A('v_xor_b32 v75, v74, v73'); A('v_lshlrev_b32 v75, 4, v75')
A(f's_and_b32 {sT2}, {sJ}, 1'); A(f's_lshl_b32 {sT2}, {sT2}, 10'); A(f's_lshr_b32 {sT3}, {sJ}, 1'); A(f's_lshl_b32 {sT3}, {sT3}, 7')
A(f's_add_u32 {sT2}, {sT2}, {sT3}'); A(f's_mul_i32 {sT3}, {sW}, {8*3072}'); A(f's_add_u32 {sT2}, {sT2}, {sT3}'); A(f's_add_u32 {sT2}, {sT2}, 1024')
A(f'v_mul_u32_u24 v{vWD}, 3072, v72'); A(f'v_add3_u32 v{vWD}, v{vWD}, v75, {sT2}')
A(f's_lshl_b32 {sM11}, {sW}, 11'); A(f's_lshl_b32 {sM10}, {sW}, 10')
A('s_waitcnt lgkmcnt(0)')
stamp('karg')
mk_srd(S_X, 4, 2048 * 1024); mk_srd(S_WQ, 6, 512 * 3072)
def kb_next(): A(f's_add_u32 {sKB}, {sKB}, 128'); A(f's_and_b32 {sKB}, {sKB}, 1023')
def q_c0(s):
    slot = s % 4
    def a():
        A(f's_add_u32 m0, {sM11}, {L_X + slot*16384}'); A(f's_mul_i32 {sD0}, {sKB}, 1536')
        dma(vXD0, S_X, sKB, 0, tag=f'c0s{s}')
    def b_(): dma(vXD1, S_X, sKB, 1024, tag=f'c0s{s}')
    def c():
        A(f's_add_u32 m0, {sM10}, {L_W0 + slot*8192}'); kb_next()
        dma(vWD, S_WQ, sD0, 0, tag=f'c0s{s}')
    FILL.extend([a, b_, c])
def q_c1(s):
    slot = s % 3
    def a():
        A(f's_add_u32 m0, {sM11}, {L_C1 + slot*16384}'); A(f's_mul_i32 {sD0}, {sKB}, {sC1M}')
        dma(vC1D0, S_C1, sD0, 0, tag=f'c1s{s}')
    def b_():
        dma(vC1D1, S_C1, sD0, 1024, tag=f'c1s{s}'); kb_next()
    FILL.extend([a, b_])
q_c0(0); q_c0(1); flush(); stamp('dma1')
mk_srd(S_DBG, 22, 256)
A(f's_or_b32 {sT2}, s2, {sW}'); A(f's_cmp_eq_u32 {sT2}, 0'); A('s_cbranch_scc1 L_nonce')
A('L_nonce_ret:')
if MAPUV == 0:
    A(f's_lshl_b32 {sU}, {sT0}, 2'); A(f's_and_b32 {sT2}, {sT1}, 3'); A(f's_add_u32 {sU}, {sU}, {sT2}'); A(f's_lshr_b32 {sV}, {sT1}, 2')
    A(f's_lshl_b32 {sT4}, {sT2}, 1'); A(f's_add_u32 {sT4}, {sT4}, {sV}')
else:
    A(f's_lshr_b32 {sU}, {sT0}, 1'); A(f's_lshl_b32 {sU}, {sU}, 3'); A(f's_and_b32 {sT2}, {sT1}, 7'); A(f's_add_u32 {sU}, {sU}, {sT2}')
    A(f's_and_b32 {sV}, {sT0}, 1'); A(f's_lshl_b32 {sV}, {sV}, 2'); A(f's_lshr_b32 {sT3}, {sT1}, 3'); A(f's_add_u32 {sV}, {sV}, {sT3}')
    A(f's_lshl_b32 {sT4}, {sT3}, 1'); A(f's_add_u32 {sT4}, {sT4}, {sT2}')
if NOROT: A(f's_mov_b32 {sT4}, 0')
A(f's_and_b32 {sRT}, {sW}, 3'); A(f's_lshr_b32 {sCT}, {sW}, 2'); A(f's_lshl_b32 {sSW}, {sCT}, 1'); A(f's_xor_b32 {sSW}, {sSW}, {sRT}')
A(f's_and_b32 {sCH}, {sW}, 1'); A(f's_lshr_b32 {sKQ}, {sW}, 1')
A(f's_lshl_b32 {sTMAX}, {sRB}, 2'); A(f's_add_u32 {sTMAX}, {sTMAX}, {sRT}')
mk_srd(S_W2, 16, 1376 * 1024); mk_srd(S_WO, 8, 512 * 1024); mk_srd(S_WS, 24, WS_SIZE); mk_srd(S_OUT, 20, 2048 * 1024)
A('s_mov_b32 s26, s18'); A('s_mov_b32 s27, s19')
A(f'v_lshl_add_u32 v{vBDMA}, v72, 10, v75')
A(f's_lshl_b32 {sT2}, {sCH}, 13'); A(f's_lshl_b32 {sT3}, {sV}, 7'); A(f's_add_u32 {sT2}, {sT2}, {sT3}'); A(f'v_add_u32 v{vBDMA}, {sT2}, v{vBDMA}')
A(f's_mul_i32 {sBS}, {sKQ}, 22'); A(f's_cmp_eq_u32 {sKQ}, 3'); A(f's_cselect_b32 {sBS}, 65, {sBS}')
A(f's_cmp_ge_u32 {sKQ}, 2'); A(f's_cselect_b32 {sT2}, 21, 22'); A(f's_add_u32 {sBE}, {sBS}, {sT2}')
A(f's_mul_i32 {sBO}, {sT4}, 11'); A(f's_lshr_b32 {sBO}, {sBO}, 2'); A(f's_cmp_ge_u32 {sBO}, {sT2}'); A(f's_cselect_b32 {sT2}, {sT2}, 0'); A(f's_sub_u32 {sBO}, {sBO}, {sT2}')
A(f's_add_u32 {sBO}, {sBO}, {sBS}')
A(f's_lshl_b32 {sT2}, {sU}, 1'); A(f's_add_u32 {sT2}, {sT2}, {sCH}')
A(f's_mul_i32 {sT3}, {sT2}, 86'); A(f's_add_u32 {sT3}, {sT3}, {HF >> 10}')
for d, s_ in ((sHO, sBO), (sHS, sBS), (sHE, sBE)): A(f's_add_u32 {d}, {s_}, {sT3}'); A(f's_lshl_b32 {d}, {d}, 10')
for r in (sBO, sBS, sBE): A(f's_lshl_b32 {r}, {r}, 14')
A(f's_and_b32 {sT4}, {sT4}, 7'); A(f's_lshl_b32 {sWOO}, {sT4}, 14'); A(f's_lshl_b32 {sOO}, {sT4}, 10')
A(f's_lshl_b32 {sOB}, {sT2}, 5'); A(f's_lshl_b32 {sT3}, {sKQ}, 3'); A(f's_add_u32 {sOB}, {sOB}, {sT3}'); A(f's_lshl_b32 {sOB}, {sOB}, 10'); A(f's_add_u32 {sOB}, {sOB}, {OF}')
A(f's_mul_i32 {sBL}, {sKQ}, {12*K1}'); A(f's_lshl_b32 {sT3}, {sCH}, 10'); A(f's_add_u32 {sBL}, {sBL}, {sT3}')
A(f's_lshl_b32 {sFLG}, {sRB}, 4'); A(f's_add_u32 {sFLG}, {sFLG}, {sJ}'); A(f's_lshl_b32 {sFLG}, {sFLG}, 8'); A(f's_lshl_b32 {sT3}, {sW}, 3'); A(f's_add_u32 {sFLG}, {sFLG}, {sT3}'); A(f's_add_u32 {sFLG}, {sFLG}, {FL}')
A(f's_mul_i32 {sT0}, {sJ}, 3'); A(f's_lshl_b32 {sT1}, {sJ}, 1'); A(f's_add_u32 {sT1}, {sT1}, 11'); A(f's_min_u32 {sTS}, {sT0}, {sT1}')
b = srd(S_C1)
A(f's_mov_b32 {sT0}, {512*2752}'); A(f's_movk_i32 {sT1}, 1376')
A(f's_cmp_ge_u32 {sW}, 6')
A(f's_cselect_b32 s{b}, s6, s12'); A(f's_cselect_b32 s{b+1}, s7, s13'); A(f's_cselect_b32 s{b+2}, {512*3072}, {sT0}')
A(f's_cselect_b32 {sC1M}, 1536, {sT1}'); A(f's_cselect_b32 {sT3}, {sJ}, {sTS}'); A(f's_cselect_b64 {sCMP}, -1, 0')
A(f's_and_b32 s{b+1}, s{b+1}, 0xffff'); A(f's_mov_b32 s{b+3}, 0x20000'); A(f's_lshl_b32 {sT3}, {sT3}, 6')
mk_srd(S_B, 14, 1376 * 2)
A(f's_lshl_b32 {sT0}, {sW}, 7')
for d, add in ((vC1D0, 0), (vC1D1, 64)):
    A(f'v_add_u32 v72, {sT0}, v0')
    if add: A(f'v_add_u32 v72, {add}, v72')
    A('v_mul_u32_u24 v73, 5462, v72'); A('v_lshrrev_b32 v73, 16, v73')
    A('v_mul_u32_u24 v74, 12, v73'); A('v_sub_u32 v74, v72, v74'); A('v_lshlrev_b32 v74, 4, v74')
    A('v_mul_u32_u24 v73, 2752, v73'); A(f'v_add_u32 v{d}, v73, v74')
assert all(c // 12 == (c * 5462) >> 16 for c in range(768))
A(f's_lshl_b32 {sT0}, {sCH}, 5')
A('v_lshrrev_b32 v72, 2, v0'); A(f'v_add_u32 v72, {sT0}, v72'); A('v_mul_u32_u24 v72, 3072, v72')
A('v_and_b32 v73, 3, v0'); A('v_lshl_add_u32 v72, v73, 4, v72'); A(f'v_add_u32 v73, {16*3072}, v72')
A(f'v_cndmask_b32 v{vC1D0}, v{vC1D0}, v72, {sCMP}'); A(f'v_cndmask_b32 v{vC1D1}, v{vC1D1}, v73, {sCMP}')
A(f'v_add_u32 v{vC1D0}, {sT3}, v{vC1D0}'); A(f's_sub_u32 {sT3}, {sT3}, 1024'); A(f'v_add_u32 v{vC1D1}, {sT3}, v{vC1D1}')
A(f'v_lshlrev_b32 v{vL16}, 4, v0')
A('v_and_b32 v73, 31, v0'); A('v_lshrrev_b32 v74, 5, v0')
A('v_bfe_u32 v75, v0, 1, 3'); A('v_xor_b32 v75, v75, v74'); A('v_lshlrev_b32 v75, 4, v75')
A(f's_lshl_b32 {sT0}, {sRT}, 12'); A(f's_lshl_b32 {sT1}, {sSW}, 5')
A('v_lshl_add_u32 v75, v73, 7, v75'); A(f'v_add_u32 v75, {sT0}, v75'); A(f'v_xor_b32 v{vXA}, {sT1}, v75')
for p in range(1, 4): A(f'v_xor_b32 v{vXA+p}, {p << 5}, v{vXA}')
def tr_lane_parts(E, r4, c4, chf, out, tmp):
    E(f'v_bfe_u32 v{r4}, v0, 2, 2'); E(f'v_and_b32 v{c4}, 3, v0'); E(f'v_bfe_u32 v{chf}, v0, 4, 1')
    E(f'v_lshrrev_b32 v{out}, 1, v{c4}'); E(f'v_lshl_add_u32 v{out}, v{chf}, 1, v{out}')
    E(f'v_bfe_u32 v{tmp}, v0, 3, 1'); E(f'v_lshlrev_b32 v{tmp}, 2, v{tmp}'); E(f'v_xor_b32 v{out}, v{out}, v{tmp}')
    E(f'v_lshlrev_b32 v{out}, 4, v{out}'); E(f'v_and_b32 v{tmp}, 1, v{c4}'); E(f'v_lshl_add_u32 v{out}, v{tmp}, 3, v{out}')
tr_lane_parts(A, 76, 77, 78, 79, 80)
A('v_lshl_add_u32 v81, v74, 3, v76')
A(f's_lshl_b32 {sT0}, {sCT}, 6'); A(f's_lshl_b32 {sT1}, {sSW}, 11'); A(f's_add_u32 {sT1}, {sT1}, {L_W0}')
A(f'v_xor_b32 v80, {sT0}, v79'); A('v_lshl_add_u32 v80, v81, 7, v80'); A(f'v_add_u32 v{vWA}, {sT1}, v80')
for p in range(1, 4): A(f'v_xor_b32 v{vWA+p}, {p << 11}, v{vWA}')
A('v_lshlrev_b32 v79, 5, v78'); A('v_lshl_add_u32 v79, v77, 3, v79')
A('v_mul_u32_u24 v80, 192, v81'); A('v_add_u32 v80, v80, v79')
A(f's_mov_b32 {sT0}, {L_C1+128}')
A(f's_cmp_eq_u32 {sCT}, 0'); A(f's_cselect_b32 {sT2}, 64, 192'); A(f's_cselect_b32 {sT3}, {L_C1+12288}, {sT0}')
A(f'v_mul_u32_u24 v81, {sT2}, v81'); A('v_add_u32 v81, v81, v79')
A(f's_lshl_b32 {sT4}, {sCT}, 6'); A(f's_add_u32 {sT4}, {sT4}, {L_C1}'); A(f'v_add_u32 v80, {sT4}, v80'); A(f'v_add_u32 v81, {sT3}, v81'); A(f's_lshl_b32 {sT4}, {sT2}, 2')
for p in range(4):
    A(f's_xor_b32 {sT0}, {sSW}, {p}'); A(f's_mul_i32 {sT1}, {sT0}, 3072'); A(f'v_add_u32 v{vU0+p}, {sT1}, v80')
    A(f's_mul_i32 {sT1}, {sT0}, {sT2}'); A(f's_lshl_b32 {sT1}, {sT1}, 4')
    A(f'v_add_u32 v{vU1A+p}, {sT1}, v81'); A(f'v_add_u32 v{vU1B+p}, {sT4}, v{vU1A+p}')
A('v_and_b32 v75, 3, v0'); A('v_lshrrev_b32 v76, 2, v0'); A('v_lshrrev_b32 v77, 4, v0'); A('v_xor_b32 v76, v76, v77'); A('v_and_b32 v76, 1, v76'); A('v_or_b32 v75, v75, v76')
A('v_cmp_eq_u32 vcc, 0, v75'); A('v_mov_b32 v84, 0x3f803f80'); A('v_mov_b32 v85, v84')
for r in range(4): A(f'v_cndmask_b32 v{vSEL+r}, 0, v84, vcc')
A('v_mov_b32 v86, v84'); A('v_mov_b32 v87, v84')
A(f'v_add_u32 v75, {L_ONES}, v{vL16}'); A('ds_write_b128 v75, v[84:87]', tag='init')
A('v_lshlrev_b32 v76, 2, v74'); A('v_sub_u32 v76, v73, v76'); A(f's_lshl_b32 {sT0}, {sRT}, 3'); A(f'v_subrev_u32 v76, {sT0}, v76')
NEG = f32(-1e30)
A(f's_cmp_eq_u32 {sCT}, 0'); A(f's_cselect_b32 {sT0}, 0, {NEG}'); A(f's_cselect_b32 {sT1}, {NEG}, 0')
A(f'v_mov_b32 v77, {sT0}'); A(f'v_mov_b32 v78, {sT1}')
for i in range(4):
    A(f'v_cmp_le_i32 vcc, {i}, v76'); A('s_nop 1'); A(f'v_cndmask_b32 v{88+i}, v78, v77, vcc')
A(f's_add_u32 {sT0}, {sM10}, {L_BIAS}'); A(f'v_add_u32 v75, {sT0}, v{vL16}'); A('ds_write_b128 v75, v[88:91]', tag='init')
A('s_mov_b32 s4, 0x22222222'); A('s_mov_b32 s5, 0x22222222'); A('s_mov_b32 s6, 0x44444444'); A('s_mov_b32 s7, 0x44444444'); A('s_mov_b32 s8, 0x88888888'); A('s_mov_b32 s9, 0x88888888')
A(f's_lshl_b32 {sT2}, {sCT}, 21'); A(f's_lshl_b32 {sT0}, {sJ}, 17'); A(f's_add_u32 {sT2}, {sT2}, {sT0}'); A(f's_lshl_b32 {sT0}, {sRT}, 10'); A(f's_add_u32 {sT2}, {sT2}, {sT0}')
A(f's_mul_i32 {sKVL}, {sCT}, {24*K1}'); A(f's_add_u32 {sKVL}, {sKVL}, {sT0}')
for d, r in enumerate((sKV0, sKV1)):
    A(f's_sub_u32 {r}, {sRB}, {2-d}'); A(f's_cselect_b32 {r}, {sRB}, {r}'); A(f's_lshl_b32 {r}, {r}, 12'); A(f's_add_u32 {r}, {r}, {sT2}')
A(f's_lshl_b32 {sKV2}, {sRB}, 12'); A(f's_add_u32 {sKV2}, {sKV2}, {sT2}')
A(f's_mul_i32 {sT2}, {sTMAX}, 86'); A(f's_add_u32 {sT0}, {sTS}, {sCT}'); A(f's_lshl_b32 {sT0}, {sT0}, 1'); A(f's_add_u32 {sT0}, {sT0}, {sT2}')
A(f's_lshl_b32 {sT0}, {sT0}, 10'); A(f's_add_u32 {sHST}, {sT0}, {HF}')
A(f's_lshl_b32 {sT2}, {sTMAX}, 5'); A(f's_lshl_b32 {sT0}, {sJ}, 1'); A(f's_add_u32 {sT2}, {sT2}, {sT0}'); A(f's_add_u32 {sT2}, {sT2}, {sCT}')
A(f's_lshl_b32 {sT2}, {sT2}, 10'); A(f's_add_u32 {sOST}, {sT2}, {OF}')
A(f's_lshl_b32 {sOUT}, {sU}, 16'); A(f's_lshl_b32 {sT0}, {sW}, 13'); A(f's_add_u32 {sOUT}, {sOUT}, {sT0}'); A(f's_lshl_b32 {sT0}, {sV}, 7'); A(f's_add_u32 {sOUT}, {sOUT}, {sT0}')
A(f's_lshl_b32 {sA1}, {sKQ}, 13'); A(f's_lshl_b32 {sA0}, {sCH}, 12'); A(f's_add_u32 {sA0}, {sA0}, {sA1}')
stamp('setup')
q_c0(2); q_c0(3); flush()
A.wait(lg=0)

def q_b(p0, region, tag):
    for p in range(p0, p0 + 6):
        def one(p=p):
            A(f's_add_u32 m0, {sBL}, {region + (p-p0)*2048}')
            if p < 22:
                if p > 0: A(f's_add_u32 {sBO}, {sBO}, 16384'); A(f's_cmp_eq_u32 {sBO}, {sBE}'); A(f's_cselect_b32 {sBO}, {sBS}, {sBO}')
                else: A('s_nop 0')
                dma(vBDMA, S_W2, sBO, 0, tag=tag)
            else:
                if p > 22: A(f's_add_u32 {sWOO}, {sWOO}, 16384'); A(f's_and_b32 {sWOO}, {sWOO}, 0x1ffff')
                A(f's_lshl_b32 {sD0}, {sKQ}, 17'); A(f's_or_b32 {sD0}, {sD0}, {sWOO}')
                dma(vBDMA, S_WO, sD0, 0, tag=tag)
        FILL.append(one)
def b_reads(p0, region, tag, dst=None):
    if XA_NOBR and tag in ('brb', 'brc1', 'brc2'):
        A.lg.append((tag, 1 << 30)); A('s_nop 15'); return
    A(f'v_add_u32 v{t0}, {region}, v{vLB4}')
    if p0 + 5 >= 22: A(f'v_add_u32 v{t1}, {region}, v{vLB5}')
    for p in range(p0, p0 + 6):
        d = (vBF + 4 * p) if dst is None else dst + 4 * (p - p0)
        a, o2 = (t0, 1024) if p < 22 else (t1, 512)
        A(f'ds_read_b64_tr_b16 {vr(d,2)}, v{a} offset:{(p-p0)*2048}', tag=tag)
        A(f'ds_read_b64_tr_b16 {vr(d+2,2)}, v{a} offset:{(p-p0)*2048+o2}', tag=tag)

def kloop(pref, reads, mfmas, hook, prelast, last_reads, prebarrier=lambda s: None, nfill=lambda n: 1, nv=0):
    A.wait(vm=f'{pref}s0'); stamp(f'{pref}b0'); A('s_barrier')
    reads(0); reads(1)
    for n in range(31):
        if (n + 2) % 4 == 0:
            s = (n + 2) // 4
            if s == 8: prelast()
            A.wait(lg=0); mfmas(n)
            if s < 8: A.wait(vm=f'{pref}s{s}')
            prebarrier(s)
            if not FEWST or s in (1, 7): stamp(f'{pref}b{s}')
            A('s_barrier')
            if s < 8: reads(n + 2)
            else: last_reads(); mfmas(31); hook(8)
        else:
            if n % 4 != 3: A.wait(lg=f'{pref}r{n}')
            mfmas(n); reads(n + 2)
            if n % 4 == 3: hook((n + 1) // 4)
            k = nfill(n); had = len(FILL); fill(k)
            vfill(nv if had else 2 * nv)

vSQb, vSQc = vCS1, vF
def c0_reads(n):
    s, p = divmod(n, 4); slot = s % 4; wb = vWB + 4 * (n % 6); t = f'c0r{n}'
    A(f'ds_read_b128 {vr(vXF+4*n,4)}, v{vXA+p} offset:{L_X + slot*16384}', tag=t)
    A(f'ds_read_b64_tr_b16 {vr(wb,2)}, v{vWA+p} offset:{slot*8192}', tag=t)
    A(f'ds_read_b64_tr_b16 {vr(wb+2,2)}, v{vWA+p} offset:{slot*8192+512}', tag=t)
def c0_mfmas(n):
    p = n % 4; wb = vWB + 4 * (n % 6); x = vXF + 4 * n
    if p == 0: A(f'v_mfma_f32_16x16x32_bf16 {vr(vCS0,4)}, {vr(vSEL,4)}, {vr(wb,4)}, {0 if n == 0 else vr(vCS0,4)}')
    if p == 1:
        z = n == 1
        for acc, src, first in ((vSQ, x - 4, z), (vSQb, x - 2, z), (vSQc, x, z), (vSQ, x + 2, False)):
            A(f'v_mfma_f32_4x4x4_16b_bf16 {vr(acc,4)}, {vr(src,2)}, {vr(src,2)}, {0 if first else vr(acc,4)}')
        A(f'v_mfma_f32_16x16x32_bf16 {vr(vRS,4)}, {vr(vSEL,4)}, {vr(x-4,4)}, {0 if z else vr(vRS,4)}')
        A(f'v_mfma_f32_16x16x32_bf16 {vr(vRS,4)}, {vr(vSEL,4)}, {vr(x,4)}, {vr(vRS,4)}')
    A(f'v_mfma_f32_32x32x16_bf16 {vr(vAC0,16)}, {vr(wb,4)}, {vr(x,4)}, {0 if n == 0 else vr(vAC0,16)}')
def kloop4(pref, reads, mfmas, hook, prelast, last_reads):
    A.wait(vm=f'{pref}s0'); stamp(f'{pref}b0'); A('s_barrier')
    for n in range(4): reads(n)
    for n in range(30):
        A.wait(lg=f'{pref}r{n}'); mfmas(n)
        if n % 4 == 0 and n < 28:
            s = n // 4 + 1
            A.wait(vm=f'{pref}s{s}')
            if not FEWST or s in (1, 7): stamp(f'{pref}b{s}')
            A('s_barrier'); reads(n + 4); hook(s)
        else:
            if n + 4 < 32: reads(n + 4)
            if n == 28: hook(8)
            fill()
    prelast(); A.wait(lg=0); mfmas(30); stamp(f'{pref}b8'); A('s_barrier'); last_reads(); mfmas(31)
def c0_hook(s):
    assert not FILL
    if 2 <= s <= 5: q_c0(s + 2)
    elif s in (6, 7): q_c1(s - 6)
    if s == 6: FILL.append(lambda: A(f'buffer_load_dwordx2 {vr(vNON,2)}, off, {S_DBG}, 0 sc1', tag='non'))
    if s == 1:
        def a():
            A(f'v_and_b32 v{t0}, 31, v0'); A(f's_lshl_b32 {sT0}, {sW}, 8'); A(f's_add_u32 {sT0}, {sT0}, {L_SROW}')
            A(f'v_lshl_add_u32 v{t1}, v{t0}, 3, {sT0}')
            A(f's_lshl_b32 {sT0}, {sCT}, 9'); A(f's_lshl_b32 {sT1}, {sRT}, 2'); A(f's_add_u32 {sT0}, {sT0}, {sT1}'); A(f's_add_u32 {sT0}, {sT0}, {L_SCOL0}')
            A(f'v_lshl_add_u32 v{t2}, v{t0}, 4, {sT0}')
        FILL.append(a)
def c0_prelast():
    flush()
    A(f'ds_write_b32 v{t2}, v{vCS0}', tag='st')
    A('s_nop 1')
    for r in range(4): A(f'v_add_f32 v{vSQb+r}, v{vSQb+r}, v{vSQc+r}')
    for r in range(4): A(f'v_add_f32 v{vSQ+r}, v{vSQ+r}, v{vSQb+r}')
    A(f'v_cndmask_b32 v{vSQ}, v{vSQ}, v{vSQ+1}, {sM1}'); A(f'v_cndmask_b32 v{vSQ}, v{vSQ}, v{vSQ+2}, {sM2}'); A(f'v_cndmask_b32 v{vSQ}, v{vSQ}, v{vSQ+3}, {sM3}')
    A(f'v_mov_b32 v{vSQ+1}, v{vSQ}')
    A(f's_lshl_b32 {sT1}, {sRT}, 2'); A(f'v_subrev_u32 v{t2}, {sT1}, v{t2}')
    A(f'v_permlane32_swap_b32 v{vSQ}, v{vSQ+1}')
    A(f'v_add_f32 v{vRS+1}, v{vSQ}, v{vSQ+1}')
    A(f'ds_write_b64 v{t1}, {vr(vRS,2)}', tag='st')
    A(f'v_xor_b32 v{t1}, 1024, v{t1}')
def c0_lastreads():
    A(f'ds_read_b64 {vr(vSQ,2)}, v{t1}', tag='str'); A(f'ds_read_b128 {vr(vCS1,4)}, v{t2}', tag='str')
kloop4('c0', c0_reads, c0_mfmas, c0_hook, c0_prelast, c0_lastreads)

def feat_frag(F, C, b1):
    A(f'v_add_f32 v{C}, v{C}, v{C+1}'); A(f'v_add_f32 v{C+2}, v{C+2}, v{C+3}'); A(f'v_add_f32 v{C}, v{C}, v{C+2}')
    A(f'v_cvt_pk_bf16_f32 v{F}, v{C}, v{C}'); A(f'v_and_b32 v{C+1}, 0xffff0000, v{F}'); A(f'v_sub_f32 v{C+1}, v{C}, v{C+1}')
    A(f'v_cvt_pk_bf16_f32 v{F+1}, v{C+1}, 0')
    if b1 is None: A(f'v_mov_b32 v{F+2}, 0')
    else: A(f'v_lshl_or_b32 v{F+1}, v{b1}, 16, v{F+1}'); A(f'v_mov_b32 v{F+2}, v{b1}')
    A(f'v_mov_b32 v{F+3}, 0')

A(f'v_and_b32 v{t0}, 31, v0'); A(f'v_lshrrev_b32 v{t1}, 5, v0'); A(f'v_lshlrev_b32 v{t0}, 5, v{t0}'); A(f'v_lshl_add_u32 v{t0}, v{t1}, 4, v{t0}')
A(f's_bitcmp1_b32 {sJ}, 0'); A(f's_cselect_b64 {sCMP}, -1, 0'); A(f's_cselect_b32 {sT0}, {VF}, {KF}')
A(f's_lshr_b32 {sT1}, {sJ}, 1'); A(f's_lshl_b32 {sT1}, {sT1}, 1'); A(f's_add_u32 {sT1}, {sT1}, {sCT}'); A(f's_lshl_b32 {sT1}, {sT1}, 17')
A(f'v_cndmask_b32 v{t0}, v{vL16}, v{t0}, {sCMP}')
A(f's_add_u32 {sT0}, {sT0}, {sT1}'); A(f's_lshl_b32 {sT1}, {sTMAX}, 10'); A(f's_add_u32 {sT0}, {sT0}, {sT1}'); A(f's_add_u32 {sT1}, {sT0}, 65536')
EPS = f32(1e-5)
m, var = vRS, vRS + 1
A.wait(lg='str')
A(f'v_add_f32 v{m}, v{vRS}, v{vSQ}'); A(f'v_add_f32 v{var}, v{vRS+1}, v{vSQ+1}')
A(f'v_mul_f32 v{m}, {f32(-1/512)}, v{m}'); A(f'v_mul_f32 v{var}, {f32(1/512)}, v{var}')
A(f'v_cvt_pk_bf16_f32 v{vT}, v{m}, v{m}')
A(f'v_fma_f32 v{var}, -v{m}, v{m}, v{var}'); A(f'v_and_b32 v{vT}, 0xffff0000, v{vT}'); A(f'v_max_f32 v{var}, 0, v{var}'); A(f'v_sub_f32 v{vT}, v{m}, v{vT}')
A(f'v_add_f32 v{vSQ}, {EPS}, v{var}'); A(f'v_cvt_pk_bf16_f32 v{vT}, v{m}, v{vT}'); A(f'v_rsq_f32 v{vR1}, v{vSQ}')
A(f'v_cvt_pk_bf16_f32 v{vT+1}, v{m}, 0'); A(f'v_mov_b32 v{vT+2}, 0'); A(f'v_mov_b32 v{vT+3}, 0')
feat_frag(vF, vCS1, None)
A('s_mov_b32 exec_lo, 0')
for r in range(2): A(f'v_mov_b32 v{vT+r}, 0')
A('s_mov_b32 exec_lo, -1')
A(f'v_mul_f32 v{vSQ}, v{var}, v{vR1}'); A(f'v_mov_b32 v{vSQ+1}, {EPS}')
A(f'v_mfma_f32_32x32x16_bf16 {vr(vAC0,16)}, {vr(vF,4)}, {vr(vT,4)}, {vr(vAC0,16)}')
A(f'v_fma_f32 v{vSQ}, v{vSQ}, v{vR1}, v{vSQ+1}'); A(f'v_rsq_f32 v{vSQ}, v{vSQ}')
A.wait(vm='non')
A(f'v_readfirstlane_b32 {sNH}, v{vNON+1}'); A(f'v_readfirstlane_b32 {sNL}, v{vNON}')
A(f'v_mul_f32 v{vSQ}, v{vSQ}, v{vR1}'); A(f'v_rcp_f32 v{vIRR}, v{vSQ}')
GC0 = -2.0 * 1.4426950408889634 * 0.7978845608028654
A(f'v_mul_f32 v{vK0}, {f32(GC0)}, v{vSQ}'); A(f'v_mul_f32 v{vK1}, v{vSQ}, v{vSQ}'); A(f'v_mul_f32 v{vK1}, v{vK1}, v{vK0}'); A(f'v_mul_f32 v{vK1}, {f32(0.044715)}, v{vK1}')
A('s_mov_b32 exec_hi, 0')
A(f'v_cvt_pk_bf16_f32 v{vT+1}, v{m}, v{vIRR}'); A(f'v_and_b32 v{vT+2}, 0xffff0000, v{vT+1}'); A(f'v_sub_f32 v{vT+2}, v{vIRR}, v{vT+2}'); A(f'v_cvt_pk_bf16_f32 v{vT+2}, v{vT+2}, 0')
A('s_mov_b32 exec_hi, -1')
for r in range(8): A(f'v_mul_f32 v{vAC0+r}, v{vR1}, v{vAC0+r}')
for r in range(4): A(f'v_cvt_pk_bf16_f32 v{vAC0+r}, v{vAC0+2*r}, v{vAC0+2*r+1}')
A(f'buffer_store_dwordx4 {vr(vAC0,4)}, v{t0}, {S_WS}, {sT0} offen sc1', tag='kvst')
for r in range(8, 16): A(f'v_mul_f32 v{vAC0+r}, v{vR1}, v{vAC0+r}')
for r in range(4, 8): A(f'v_cvt_pk_bf16_f32 v{vAC0+r}, v{vAC0+2*r}, v{vAC0+2*r+1}')
A(f'buffer_store_dwordx4 {vr(vAC0+4,4)}, v{t0}, {S_WS}, {sT1} offen sc1', tag='kvst')
A(f's_cmp_eq_u32 {sNH}, 0'); A('s_cbranch_scc1 L_nonspin')
A('L_nonspin_ret:')
stamp('c0end')

a0, a1, a2, a3, a4 = 66, 67, 68, 69, 70
tr_lane_parts(D, a0, a1, a2, a3, a4)
D(f'v_lshrrev_b32 v{a4}, 5, v0')
D(f's_lshl_b32 {sT1}, {sCH}, 6'); D(f'v_xor_b32 v{a3}, {sT1}, v{a3}'); D(f's_mul_i32 {sT1}, {sKQ}, {12*K1}'); D(f'v_add_u32 v{a3}, {sT1}, v{a3}')
D(f'v_lshl_add_u32 v{vLB4}, v{a4}, 2, v{a0}'); D(f'v_lshl_add_u32 v{vLB4}, v{vLB4}, 7, v{a3}'); D(f'v_lshl_add_u32 v{vLB5}, v{a4}, 9, v{vLB4}')
D(f's_sub_u32 {sT0}, {sRB}, 2\ns_cselect_b32 {sT0}, {sRB}, {sT0}'); D(f's_sub_u32 {sT1}, {sRB}, 1\ns_cselect_b32 {sT1}, {sRB}, {sT1}')
D(f'v_mov_b32 v{vPKA}, {sRB}'); D(f'v_writelane_b32 v{vPKA}, {sT0}, 0'); D(f'v_writelane_b32 v{vPKA}, {sT1}, 1')
D(f's_and_b32 {sT0}, {sJ}, 14'); D(f's_add_u32 {sT0}, {sT0}, {sCT}'); D(f's_lshl_b32 {sT0}, {sT0}, 8')
D(f's_and_b32 {sT1}, {sJ}, 1'); D(f's_lshl_b32 {sT1}, {sT1}, 2'); D(f's_add_u32 {sT1}, {sT1}, {sRT}'); D(f's_lshl_b32 {sT1}, {sT1}, 3')
D(f's_add_u32 {sT0}, {sT0}, {sT1}'); D(f's_add_u32 {sT0}, {sT0}, {FL+FK}')
D(f'v_lshlrev_b32 v{vPKA}, 12, v{vPKA}'); D(f'v_add_u32 v{vPKA}, {sT0}, v{vPKA}')
D(f'v_add_u32 v{vL16B}, 0x10000, v{vL16}')
NV_KV = len(VF_)
D(f's_mul_i32 {sT0}, {sCT}, {12*K1}'); D(f's_lshl_b32 {sT1}, {sRT}, 10'); D(f's_add_u32 {sT0}, {sT0}, {sT1}')
D(f'v_add_u32 v{vKA}, {sT0}, v{vL16}')
D(f'v_lshlrev_b32 v{a3}, 7, v{a4}'); D(f'v_lshl_add_u32 v{a3}, v{a0}, 5, v{a3}'); D(f'v_lshl_add_u32 v{a3}, v{a1}, 3, v{a3}')
D(f's_add_u32 {sT0}, {sT0}, {24*K1+8*K1}'); D(f'v_add_u32 v{a3}, {sT0}, v{a3}')
D(f'v_and_b32 v{a0}, 15, v0'); D(f'v_lshlrev_b32 v{a0}, 3, v{a0}'); D(f'v_xor_b32 v{a4}, 1, v{a4}'); D(f'v_lshl_add_u32 v{a0}, v{a4}, 7, v{a0}'); D(f'v_add_u32 v{a0}, {L_ONES}, v{a0}')
D(f'v_cmp_eq_u32 {sCMP}, 0, v{a2}'); D(f'v_mov_b32 v{a4}, {-1024 & 0xffffffff}'); D('s_nop 0')
D(f'v_cndmask_b32 v{vVA}, v{a0}, v{a3}, {sCMP}'); D(f'v_cndmask_b32 v{vVST}, 0, v{a4}, {sCMP}')
D(f's_lshl_b32 {sT0}, {sU}, 1'); D(f's_add_u32 {sT0}, {sT0}, {sCH}')
D(f's_lshr_b32 {sT1}, {sT0}, 2'); D(f's_lshl_b32 {sT1}, {sT1}, 12'); D(f's_and_b32 {sT0}, {sT0}, 3'); D(f's_lshl_b32 {sT0}, {sT0}, 3'); D(f's_add_u32 {sT1}, {sT1}, {sT0}')
D(f's_add_u32 {sT1}, {sT1}, {FL+FH}')
D(f'v_and_b32 v{a1}, 1, v0'); D(f'v_lshlrev_b32 v{a1}, 5, v{a1}'); D(f'v_add_u32 v{a1}, {sT1}, v{a1}')
D(f'v_bfe_u32 v{a0}, v0, 1, 4'); D(f'v_lshl_add_u32 v{vPHA}, v{a0}, 8, v{a1}')
D(f's_lshl_b32 {sT0}, {sKQ}, 10'); D(f's_add_u32 {sT0}, {sT0}, {FO-FH}')
D(f'v_and_b32 v{a0}, 3, v{a0}'); D(f'v_lshl_add_u32 v{vPOA}, v{a0}, 8, v{a1}'); D(f'v_add_u32 v{vPOA}, {sT0}, v{vPOA}')
D(f'v_lshrrev_b32 v{a0}, 4, v0'); D(f'v_bfe_u32 v{a1}, v0, 3, 1'); D(f'v_lshl_add_u32 v{a2}, v{a1}, 2, v{a0}')
D(f'v_and_b32 v{a3}, 7, v0'); D(f'v_lshlrev_b32 v{a3}, 4, v{a3}'); D(f'v_lshl_add_u32 v{vROW}, v{a2}, 10, v{a3}')
D(f's_lshl_b32 {sT0}, {sW}, 2'); D(f'v_add_u32 v{a0}, {sT0}, v{a0}'); D(f'v_mul_u32_u24 v{a0}, {REDP}, v{a0}'); D(f'v_lshl_add_u32 v{a0}, v{a1}, 7, v{a0}')
D(f'v_and_b32 v{a1}, 3, v0'); D(f'v_lshl_add_u32 v{a0}, v{a1}, 5, v{a0}')
D(f'v_bfe_u32 v{a1}, v0, 2, 1'); D(f'v_mul_u32_u24 v{a1}, {32*REDP}, v{a1}'); D(f'v_add_u32 v{vRED}, v{a0}, v{a1}')
D(f'v_and_b32 v{t0}, 31, v0')
D(f's_lshl_b32 {sT0}, {sCT}, 10'); D(f's_lshl_b32 {sT1}, {sRT}, 2'); D(f's_add_u32 {sT0}, {sT0}, {sT1}'); D(f's_add_u32 {sT0}, {sT0}, {L_SCOL1}')
D(f'v_lshl_add_u32 v{t2}, v{t0}, 4, {sT0}'); D(f'v_subrev_u32 v{t1}, {sT1}, v{t2}')
for r in range(16): D(f'v_mov_b32 v{vCB+r}, 0')
NV_ALL = len(VF_)

def c1_reads(n):
    s, p = divmod(n, 4); slot = s % 3; wb = vWB + 8 * (n % 3); t = f'c1r{n}'; o = slot * 16384
    A(f'ds_read_b64_tr_b16 {vr(wb,2)}, v{vU0+p} offset:{o}', tag=t)
    A(f'ds_read_b64_tr_b16 {vr(wb+2,2)}, v{vU0+p} offset:{o+768}', tag=t)
    A(f'ds_read_b64_tr_b16 {vr(wb+4,2)}, v{vU1A+p} offset:{o}', tag=t)
    A(f'ds_read_b64_tr_b16 {vr(wb+6,2)}, v{vU1B+p} offset:{o}', tag=t)
def c1_mfmas(n):
    p = n % 4; wb = vWB + 8 * (n % 3); x = vXF + 4 * n; z = n == 0
    if p == 0:
        A(f'v_mfma_f32_16x16x32_bf16 {vr(vCS0,4)}, {vr(vSEL,4)}, {vr(wb,4)}, {0 if z else vr(vCS0,4)}')
        A(f'v_mfma_f32_16x16x32_bf16 {vr(vCS1,4)}, {vr(vSEL,4)}, {vr(wb+4,4)}, {0 if z else vr(vCS1,4)}')
    A(f'v_mfma_f32_32x32x16_bf16 {vr(vAC0,16)}, {vr(wb,4)}, {vr(x,4)}, {0 if z else vr(vAC0,16)}')
    A(f'v_mfma_f32_32x32x16_bf16 {vr(vAC1,16)}, {vr(wb+4,4)}, {vr(x,4)}, {0 if z else vr(vAC1,16)}')
def q_b1():
    def a():
        A(f'v_and_b32 v{vB1+1}, 31, v0'); A(f'v_lshlrev_b32 v{vB1+1}, 1, v{vB1+1}')
        A(f's_add_u32 {sT2}, {sTS}, {sCT}'); A(f's_lshl_b32 {sT2}, {sT2}, 6')
        A(f'buffer_load_ushort v{vB1}, v{vB1+1}, {S_B}, {sT2} offen', tag='b1')
        A(f's_add_u32 {sT2}, {sTS}, 2'); A(f's_lshl_b32 {sT2}, {sT2}, 6'); A(f's_cmp_eq_u32 {sCT}, 0'); A(f's_cselect_b32 {sT2}, 0x10000, {sT2}')
        A(f'buffer_load_ushort v{vB1+1}, v{vB1+1}, {S_B}, {sT2} offen', tag='b1')
    FILL.append(a)
q_c1(2)
def c1_hook(s):
    if s == 4: q_b1()
    if s == PUBK: A.wait(vm='kvst'); publish(FK)
    if s + 2 <= 7:
        old = list(FILL); FILL.clear(); q_c1(s + 2); FILL.extend(old)
    if s == BA_AT: q_b(0, L_RA, 'bA')
    if s == KV_AT - 1:
        assert NV_ALL - len(VF_) >= NV_KV
        FILL.append(lambda: poll_issue(vPKA, vPK, 'kvpoll'))
    if s == KV_AT:
        poll_finish(vPKA, vPK, 'kvpoll')
        for d, r in enumerate((sKV0, sKV1, sKV2)):
            for e in range(2):
                def a(d=d, r=r, e=e):
                    A(f's_add_u32 m0, {sKVL}, {d*4096+e*12*K1}'); A('s_nop 0')
                    dma(vL16B if e else vL16, S_WS, r, 0, tag='kv', sc1=True)
                FILL.append(a)
    if s == 8:
        b_reads(0, L_RA, 'bra'); q_b(6, L_RB, 'bB')
def c1_prebar(s):
    if s == 8: flush(); A.wait(vm='bA')
def c1_prelast():
    vflush()
    A(f'ds_write_b32 v{t2}, v{vCS0}', tag='st'); A(f'ds_write_b32 v{t2}, v{vCS1} offset:512', tag='st')
def c1_lastreads():
    A(f'ds_read_b128 {vr(vCS0,4)}, v{t1}', tag='str1'); A(f'ds_read_b128 {vr(vCS1,4)}, v{t1} offset:512', tag='str1')
kloop('c1', c1_reads, c1_mfmas, c1_hook, c1_prelast, c1_lastreads, c1_prebar, nfill=lambda n: 1 if len(FILL) <= 3 else 2, nv=4)

fill(1)
A.wait(lg='str1', vm='b1')
feat_frag(vF + 4, vCS1, vB1 + 1); feat_frag(vF, vCS0, vB1)
A(f'v_mfma_f32_32x32x16_bf16 {vr(vAC1,16)}, {vr(vF+4,4)}, {vr(vT,4)}, {vr(vAC1,16)}')
A(f'v_add_u32 v{vBIA}, {L_BIAS}, v{vL16}')
A(f'v_mfma_f32_32x32x16_bf16 {vr(vAC0,16)}, {vr(vF,4)}, {vr(vT,4)}, {vr(vAC0,16)}')
fill(1)
A(f'v_add_u32 v{vAS[0]}, {sA1}, v{vL16}'); A(f'v_add_u32 v{vAS[1]}, 0x10000, v{vAS[0]}')
A(f's_lshl_b32 {sT0}, {sRT}, 10'); A(f's_add_u32 {sT0}, {sT0}, {L_QX}'); A(f'v_add_u32 v{t2}, {sT0}, v{vL16}')
vGT = 128
def gelu_store(acc, off, slot=lambda g, k: None):
    tmp = vGT
    for g in range(2):
        a = acc + 8 * g
        for r in range(8): A(f'v_mul_f32 v{tmp+r}, v{a+r}, v{a+r}')
        for r in range(8): A(f'v_fma_f32 v{tmp+r}, v{tmp+r}, v{vK1}, v{vK0}')
        for r in range(8): A(f'v_mul_f32 v{tmp+r}, v{tmp+r}, v{a+r}')
        slot(g, 0)
        for r in range(8): A(f'v_exp_f32 v{tmp+r}, v{tmp+r}')
        for r in range(8): A(f'v_fma_f32 v{tmp+r}, v{tmp+r}, v{vIRR}, v{vIRR}')
        slot(g, 1)
        for r in range(8): A(f'v_rcp_f32 v{tmp+r}, v{tmp+r}')
        for r in range(8): A(f'v_mul_f32 v{a+r}, v{tmp+r}, v{a+r}')
        for r in range(4): A(f'v_cvt_pk_bf16_f32 v{a+r}, v{a+2*r}, v{a+2*r+1}')
        A(f'buffer_store_dwordx4 {vr(a,4)}, v{vL16}, {S_WS}, {sHST} offen offset:{off+1024*g} sc1', tag='hst')
Lqe, Lee = A.label('qe'), A.label('ee')
A(f's_cmp_eq_u32 {sCT}, 0'); A(f's_cbranch_scc1 {Lqe}')
A(f's_cmp_ge_u32 {sJ}, 11'); A(f's_cbranch_scc1 {Lee}')
A.opt_begin()
gelu_store(vAC1, 2048)
A.wait(vm='kv')
A(f's_branch {Lee}2')
A.opt_end()
A(f'{Lqe}:')
A.opt_begin()
A(f'v_mul_f32 v{vR1}, {f32(0.25*1.4426950408889634)}, v{vR1}')
for r in range(16): A(f'v_mul_f32 v{vAC1+r}, v{vR1}, v{vAC1+r}')
for r in range(4): A(f'v_cvt_pk_bf16_f32 v{vQ+r}, v{vAC1+2*r}, v{vAC1+2*r+1}')
for r in range(4): A(f'v_cvt_pk_bf16_f32 v{vAC1+r}, v{vAC1+8+2*r}, v{vAC1+8+2*r+1}')
A(f'ds_write_b128 v{t2}, {vr(vAC1,4)}', tag='qx')
A.opt_end()
A(f'{Lee}:')
A.opt_begin(); A.assume = set()
A.wait(vm='kv')
A.opt_end()
A(f'{Lee}2:')

A.wait(lg=0); stamp('pm'); A('s_barrier')
Lq1 = A.label('q1')
A(f's_cmp_eq_u32 {sCT}, 0'); A(f's_cbranch_scc1 {Lq1}')
A.opt_begin()
A(f'ds_read_b128 {vr(vQ,4)}, v{t2}', tag='qr')
A.opt_end()
A(f'{Lq1}:')
def Sb(t): return vS0 + 16 * (t & 1)
def k_read(t): A(f'ds_read_b128 {vr(vKB+4*(t&1),4)}, v{vKA} offset:{(8-t)*1024}', tag=f'kv{t-1}')
def v_read(t):
    vb = vVB + 8 * (t & 1)
    for q in range(4): A(f'ds_read_b64_tr_b16 {vr(vb+2*q,2)}, v{vVA} offset:{q*256}', tag=f'kv{t}')
def bias_read(tab, dst, tag):
    for g in range(4): A(f'ds_read_b128 {vr(dst+4*g,4)}, v{vBIA} offset:{(tab*4+g)*1024}', tag=tag)
k_read(0); bias_read(0, Sb(0), 'kv-1'); k_read(1); v_read(0)
q_b(12, L_RA, 'bC1')
def g2slot(g, k):
    if (g, k) == (0, 1):
        A.wait(lg='kv-1')
        A(f'v_mfma_f32_32x32x16_bf16 {vr(Sb(0),16)}, {vr(vKB,4)}, {vr(vQ,4)}, {vr(Sb(0),16)}')
    fill()
gelu_store(vAC0, 0, g2slot)
stamp('gelu')
SB = [0, 4, 8, 12, 16, 20, 22, 26, 30]
def slot_of(u): return (u + 2) % 3
def q_a(u):
    for q in range(SB[u + 1] - SB[u]):
        def one(q=q):
            A(f's_add_u32 m0, {sA0}, {slot_of(u)*32768 + q*1024}')
            if u < 6:
                if SB[u] + q > 0: A(f's_add_u32 {sHO}, {sHO}, 1024'); A(f's_cmp_eq_u32 {sHO}, {sHE}'); A(f's_cselect_b32 {sHO}, {sHS}, {sHO}')
                else: A('s_nop 0')
                dma(vL16, S_WS, sHO, 0, tag=f'a{u}', sc1=True)
            else:
                if SB[u] + q > 22: A(f's_add_u32 {sOO}, {sOO}, 1024'); A(f's_and_b32 {sOO}, {sOO}, 0x1fff')
                A(f's_add_u32 {sD0}, {sOO}, {sOB}')
                dma(vL16, S_WS, sD0, 0, tag=f'a{u}', sc1=True)
        FILL.append(one)
MASKS = []
def pv(t, g):
    vb = vVB + 8 * (t & 1) + 4 * g
    A(f'v_mfma_f32_32x32x16_bf16 {vr(vO,16)}, {vr(vb,4)}, {vr(vP+4*g,4)}, {0 if (t, g) == (0, 0) else vr(vO,16)}')
def tile(t, nf):
    cur, nxt = Sb(t), Sb(t + 1)
    A.wait(lg=f'kv{t}')
    if t < 7:
        L = A.label('msk'); MASKS.append((L, vCB))
        A(f's_cmp_eq_u32 {sTMAX}, {t}'); A(f's_cbranch_scc1 {L}'); A(f'{L}r:')
    elif t > 0: A('s_nop 0')
    if t > 0: pv(t - 1, 1)
    if t < 8: A(f'v_add_u32 v{vVA}, v{vVA}, v{vVST}')
    if t < 7:
        A(f'v_mfma_f32_32x32x16_bf16 {vr(nxt,16)}, {vr(vKB+4*((t+1)&1),4)}, {vr(vQ,4)}, {vr(vCB,16)}')
        k_read(t + 2)
    if t == 7: bias_read(1, nxt, 'b8')
    if t < 8: v_read(t + 1)
    for r in range(8): A(f'v_exp_f32 v{cur+r}, v{cur+r}')
    if t == 7:
        L = A.label('msk'); MASKS.append((L, nxt))
        A.wait(lg='b8')
        A(f's_cmp_le_u32 {sTMAX}, 7'); A(f's_cbranch_scc1 {L}'); A(f'{L}r:')
        A(f'v_mfma_f32_32x32x16_bf16 {vr(nxt,16)}, {vr(vKB,4)}, {vr(vQ,4)}, {vr(nxt,16)}')
    elif nf > 0 and FILL: fill()
    else: A('s_nop 0')
    for r in range(4): A(f'v_cvt_pk_bf16_f32 v{vP+r}, v{cur+2*r}, v{cur+2*r+1}')
    for r in range(8, 12): A(f'v_exp_f32 v{cur+r}, v{cur+r}')
    pv(t, 0)
    if nf > 1: fill()
    for r in range(12, 16): A(f'v_exp_f32 v{cur+r}, v{cur+r}')
    if nf > 2: fill()
    for r in range(4): A(f'v_cvt_pk_bf16_f32 v{vP+4+r}, v{cur+8+2*r}, v{cur+8+2*r+1}')
XB, X12, X3, NF = opt('--xb', 0), opt('--x12', 2), opt('--x3', 5), opt('--nf', 3)
for t in range(9):
    tile(t, NF)
    if t == XB: A.wait(vm='bB'); A('s_barrier'); b_reads(6, L_RB, 'brb')
    if t == X12:
        assert not FILL
        A.wait(vm='bC1', lg='brb'); publish(FH); A('s_barrier'); b_reads(12, L_RA, 'brc1'); q_b(18, L_RB, 'bC2')
    if t == X3 - 1:
        assert not FILL
        poll_issue(vPHA, vPD, 'hpoll')
    if t == X3:
        poll_finish(vPHA, vPD, 'hpoll'); stamp('hready')
        A.wait(lg='brc1'); A('s_barrier'); b_reads(18, L_RB, 'brc2'); q_a(0)
        mk_srd(S_B, 26, 1024)
        A(f'v_and_b32 v{t1}, 7, v0'); A(f'v_lshlrev_b32 v{t1}, 4, v{t1}'); A(f's_lshl_b32 {sT0}, {sV}, 7')
    stamp(f'tile{t}')
A('s_nop 0'); A.wait(lg=0); pv(8, 1)
A(f's_mov_b32 {sT2}, {f32(2.0**-64) if not FORCE_FB else f32(2.0**100)}'); A(f's_mov_b32 {sT1}, {f32(2.0**64)}'); A('s_nop 9')
A(f'v_cmp_le_f32 vcc, {sT2}, v{vO+8}'); A(f'v_cmp_ge_f32 {sCMP}, {sT1}, v{vO+8}')
A(f's_and_b64 vcc, vcc, {sCMP}'); A('s_cmp_eq_u64 vcc, -1'); A('s_cbranch_scc0 L_fallback')
A('L_attfin:')
A(f'v_rcp_f32 v{t0}, v{vO+8}'); A('s_nop 0')
for r in range(8): A(f'v_mul_f32 v{vO+r}, v{t0}, v{vO+r}')
for r in range(4): A(f'v_cvt_pk_bf16_f32 v{vP+r}, v{vO+2*r}, v{vO+2*r+1}')
A(f'buffer_store_dwordx4 {vr(vP,4)}, v{vL16}, {S_WS}, {sOST} offen sc1', tag='ost')

assert not FILL
stamp('ost')
A('s_barrier')
q_a(1); q_a(2); flush()
A(f'buffer_load_dwordx4 {vr(vXR,4)}, v{vROW}, {S_X}, {sOUT} offen', tag='xr')
A(f'buffer_load_dwordx4 {vr(vB2,4)}, v{t1}, {S_B}, {sT0} offen', tag='xr')
A.wait(vm='ost'); publish(FO)
q_b(24, L_RB, 'bD')
def resid():
    for r in range(4):
        A(f'v_lshlrev_b32 v{vE+2*r}, 16, v{vXR+r}'); A(f'v_and_b32 v{vE+2*r+1}, 0xffff0000, v{vXR+r}')
        A(f'v_lshlrev_b32 v{vXR+r}, 16, v{vB2+r}'); A(f'v_and_b32 v{vB2+r}, 0xffff0000, v{vB2+r}')
        A(f'v_add_f32 v{vE+2*r}, v{vE+2*r}, v{vXR+r}'); A(f'v_add_f32 v{vE+2*r+1}, v{vE+2*r+1}, v{vB2+r}')
def stage_of(mm): return max(u for u in range(8) if SB[u] <= mm)
def a_reads(mm):
    u = stage_of(mm); ab = vAB + 8 * (mm % 3); q = mm - SB[u]; sl = slot_of(u); a, o = (vAS[0], sl * 32768) if sl < 2 else (vAS[1], 0)
    A(f'ds_read_b128 {vr(ab,4)}, v{a} offset:{o + q*1024}', tag=f'ar{mm}')
    A(f'ds_read_b128 {vr(ab+4,4)}, v{a} offset:{o + 4096 + q*1024}', tag=f'ar{mm}')
def a_mfmas(mm):
    ab = vAB + 8 * (mm % 3); bf = (vBF + 4 * mm) if mm < 24 else (vBD + 4 * (mm - 24)); z = mm == 0
    if mm == 21:
        Lk = A.label('k21'); A(f's_cmp_ge_u32 {sKQ}, 2'); A(f's_cbranch_scc1 {Lk}'); A.opt_begin()
    A(f'v_mfma_f32_32x32x16_bf16 {vr(vAC0,16)}, {vr(ab,4)}, {vr(bf,4)}, {0 if z else vr(vAC0,16)}')
    A(f'v_mfma_f32_32x32x16_bf16 {vr(vAC1,16)}, {vr(ab+4,4)}, {vr(bf,4)}, {0 if z else vr(vAC1,16)}')
    if mm == 21: A.opt_end(); A(f'{Lk}:')
A.wait(vm='a0'); stamp('a0'); A('s_barrier')
a_reads(0); a_reads(1)
for mm in range(29):
    if mm + 2 in SB:
        u = SB.index(mm + 2)
        if u > 2: flush()
        A.wait(lg=0); a_mfmas(mm)
        if u < 8: A.wait(vm=f'a{u}')
        stamp(f'a{u}')
        A('s_barrier')
        if u < 8: a_reads(mm + 2)
        else: a_mfmas(29)
        if u == 4: poll_finish(vPOA, vPD, 'opoll')
        if u + 2 <= 7:
            old = list(FILL); FILL.clear(); q_a(u + 2); FILL.extend(old); fill()
        if u == 5: b_reads(24, L_RB, 'brd', dst=vBD)
        if u == 6: resid()
        if u == 3: FILL.append(lambda: poll_issue(vPOA, vPD, 'opoll'))
    else:
        if mm + 1 not in SB: A.wait(lg=f'ar{mm}')
        a_mfmas(mm); a_reads(mm + 2); fill(2 if len(FILL) > 3 else 1)
A(f's_mul_i32 {sT0}, {sW}, {32*REDP}'); A(f's_mov_b32 m0, {sT0}')
A('s_nop 8')
for r in range(32): A(f'ds_write_addtid_b32 v{vAC0+r} offset:{r*REDP}', tag='red')
A.wait(lg=0); stamp('redw'); A('s_barrier')
vR = 160
for q in range(4):
    A(f'ds_read_b128 {vr(vR+8*q,4)}, v{vRED} offset:{q*64*REDP}', tag=f'rr{q}'); A(f'ds_read_b128 {vr(vR+8*q+4,4)}, v{vRED} offset:{q*64*REDP+16}', tag=f'rr{q}')
for q in range(4):
    A.wait(lg=f'rr{q}')
    for r in range(8): A(f'v_add_f32 v{vE+r}, v{vE+r}, v{vR+8*q+r}')
for r in range(4): A(f'v_cvt_pk_bf16_f32 v{vE+r}, v{vE+2*r}, v{vE+2*r+1}')
A(f'buffer_store_dwordx4 {vr(vE,4)}, v{vROW}, {S_OUT}, {sOUT} offen {sys.argv[sys.argv.index("--outst")+1].replace("+"," ") if flag("--outst") else ""}', tag='out')
if STAMPS:
    stamp('end', True)
    A(f's_lshl_b32 {sT0}, s2, 3'); A(f's_add_u32 {sT0}, {sT0}, {sW}'); A(f's_lshl_b32 {sT0}, {sT0}, 8'); A(f's_add_u32 {sT0}, {sT0}, {ST}')
    A(f's_memrealtime {sSTMP}'); A('s_waitcnt lgkmcnt(0)'); A(f'v_writelane_b32 v{vSTMP}, s96, 63')
    A(f'v_lshlrev_b32 v{t0}, 2, v0'); A(f'buffer_store_dword v{vSTMP}, v{t0}, {S_WS}, {sT0} offen')
    if flag('--dbgout'):
        A(f'v_readlane_b32 {sT1}, v{vSTMP}, 62'); A(f's_sub_u32 s96, s96, {sT1}'); A(f'v_writelane_b32 v{vSTMP}, s96, 13')
        A(f's_cmp_eq_u32 s2, 40'); A(f's_cselect_b32 {sT0}, {sW}, 1'); A(f's_cmp_eq_u32 {sT0}, 0'); A(f's_cselect_b64 exec, 0x3fff, 0')
        A(f'buffer_store_dword v{vSTMP}, v{t0}, {S_DBG}, 0 offen offset:8')
if opt('--spin', 0):
    A(f's_mov_b32 {sT0}, {opt("--spin", 0)}'); A('L_spin:'); A('s_nop 15'); A(f's_sub_u32 {sT0}, {sT0}, 1'); A(f's_cmp_lg_u32 {sT0}, 0'); A('s_cbranch_scc1 L_spin')
if opt('--deadline', 0):
    A('L_dl:'); A('s_memrealtime s[96:97]'); A('s_waitcnt lgkmcnt(0)'); A('s_sub_u32 s96, s96, s98'); A(f's_cmp_lt_u32 s96, {opt("--deadline", 0)}'); A('s_cbranch_scc1 L_dl')
A('L_end:')
A('s_endpgm')
main = list(A.ins)

B = Asm(); B.nlabel = 1000
B('L_nonce:')
B(f's_memrealtime {sNON}'); B('s_waitcnt lgkmcnt(0)')
B(f's_or_b32 {sNH}, {sNH}, 0x80000000'); B(f'v_mov_b32 v{vNON}, {sNL}'); B(f'v_mov_b32 v{vNON+1}, {sNH}')
B('s_mov_b64 exec, 1')
B(f'buffer_store_dwordx2 {vr(vNON,2)}, off, {S_DBG}, 0 sc1')
B('s_mov_b64 exec, -1'); B('s_branch L_nonce_ret')
B('L_nonspin:')
B(f's_mov_b32 {sSPIN}, 0')
B('L_nonspin_l:')
B(f'buffer_load_dwordx2 {vr(vNON,2)}, off, {S_DBG}, 0 sc1')
B(f's_add_u32 {sSPIN}, {sSPIN}, 1'); B('s_waitcnt vmcnt(0)')
B(f'v_readfirstlane_b32 {sNH}, v{vNON+1}'); B(f'v_readfirstlane_b32 {sNL}, v{vNON}'); B(f's_cmp_ge_u32 {sSPIN}, 0x8000'); B('s_cbranch_scc1 L_nonspin_ret')
B(f's_cmp_eq_u32 {sNH}, 0'); B('s_cbranch_scc1 L_nonspin_l'); B('s_branch L_nonspin_ret')
for L, E, vaddr, P in SPINS:
    B(f'{L}:'); B(f's_mov_b32 {sSPIN}, 0'); B(f'{L}l:')
    B(f'buffer_load_dwordx2 {vr(P,2)}, v{vaddr}, {S_WS}, 0 offen sc1')
    B(f's_add_u32 {sSPIN}, {sSPIN}, 1'); B('s_waitcnt vmcnt(0)')
    B(f'v_cmp_ne_u64 vcc, {sNON}, {vr(P,2)}')
    B(f's_cmp_ge_u32 {sSPIN}, 0x8000'); B(f's_cbranch_scc1 {E}')
    B(f's_cbranch_vccnz {L}l'); B(f's_branch {E}')
for L, dst in MASKS:
    B(f'{L}:'); B('s_nop 7')
    for r in range(16): B(f'v_mov_b32 v{dst+r}, {NEG}')
    B('s_nop 0'); B(f's_branch {L}r')
vKA2, vM, vVA2 = 128, 129, 130
S0, S1 = vS0, vS0 + 16
B('L_fallback:')
B(f's_min_u32 {sT4}, {sTMAX}, 8')
def fb_scores():
    L1 = B.label('fb')
    B(f'ds_read_b128 {vr(vKB,4)}, v{vKA2}'); B('s_waitcnt lgkmcnt(0)')
    B(f'v_mfma_f32_32x32x16_bf16 {vr(S0,16)}, {vr(vKB,4)}, {vr(vQ,4)}, 0')
    B(f's_and_b32 {sT1}, {sT3}, 7'); B(f's_cmp_lg_u32 {sT1}, 0'); B('s_nop 15'); B(f's_cbranch_scc1 {L1}')
    B(f's_lshl_b32 {sT1}, {sT3}, 9'); B(f'v_add_u32 v{vM+2}, {sT1}, v{vBIA}')
    for g in range(4): B(f'ds_read_b128 {vr(S1+4*g,4)}, v{vM+2} offset:{g*1024}')
    B('s_waitcnt lgkmcnt(0)')
    for r in range(16): B(f'v_add_f32 v{S0+r}, v{S0+r}, v{S1+r}')
    B(f'{L1}:')
B(f's_mov_b32 {sT3}, 0'); B(f'v_add_u32 v{vKA2}, 8192, v{vKA}'); B(f'v_mov_b32 v{vM}, {f32(-3e38)}')
La = B.label('fa'); B(f'{La}:')
fb_scores()
for r in range(8): B(f'v_max3_f32 v{vM}, v{vM}, v{S0+2*r}, v{S0+2*r+1}')
B(f'v_subrev_u32 v{vKA2}, 1024, v{vKA2}'); B(f's_add_u32 {sT3}, {sT3}, 1'); B(f's_cmp_le_u32 {sT3}, {sT4}'); B(f's_cbranch_scc1 {La}')
B(f'v_mov_b32 v{vM+3}, v{vM}'); B('s_nop 1'); B(f'v_permlane32_swap_b32 v{vM}, v{vM+3}'); B(f'v_max_f32 v{vM}, v{vM}, v{vM+3}')
B(f'v_lshlrev_b32 v{vVA2}, 3, v{vVST}'); B(f'v_sub_u32 v{vVA2}, v{vVA}, v{vVA2}')
B(f's_mov_b32 {sT3}, 0'); B(f'v_add_u32 v{vKA2}, 8192, v{vKA}')
for r in range(16): B(f'v_mov_b32 v{vO+r}, 0')
Lb = B.label('fbb'); B(f'{Lb}:')
for q in range(4): B(f'ds_read_b64_tr_b16 {vr(vVB+2*q,2)}, v{vVA2} offset:{q*256}')
fb_scores()
for r in range(16): B(f'v_sub_f32 v{S0+r}, v{S0+r}, v{vM}')
for r in range(16): B(f'v_exp_f32 v{S0+r}, v{S0+r}')
B('s_nop 0')
for r in range(8): B(f'v_cvt_pk_bf16_f32 v{vP+r}, v{S0+2*r}, v{S0+2*r+1}')
B('s_nop 1')
B(f'v_mfma_f32_32x32x16_bf16 {vr(vO,16)}, {vr(vVB,4)}, {vr(vP,4)}, {vr(vO,16)}')
B(f'v_mfma_f32_32x32x16_bf16 {vr(vO,16)}, {vr(vVB+4,4)}, {vr(vP+4,4)}, {vr(vO,16)}')
B(f'v_subrev_u32 v{vKA2}, 1024, v{vKA2}'); B(f'v_add_u32 v{vVA2}, v{vVA2}, v{vVST}')
B(f's_add_u32 {sT3}, {sT3}, 1'); B(f's_cmp_le_u32 {sT3}, {sT4}'); B(f's_cbranch_scc1 {Lb}')
B('s_nop 15'); B('s_branch L_attfin')
B('L_codeend:')

probs = check(main, True) + check(main, False) + check(B.ins, True)
for p in dict.fromkeys(probs): print(p, file=sys.stderr)

hdr = open('parallel_sum__sliding_block__mixer_channel_mlp__prompt.s.ref').read().split('; Override launch')[0]
text = hdr + f'''; @launch grid=(256,1,1) block=(512,1,1) lds={LDS_BYTES}
.amdgcn_target "amdgcn-amd-amdhsa--gfx950"
.text
.globl {NAME}
.p2align 8
.type {NAME},@function
{NAME}:
''' + A.text() + '\n' + B.text() + f'''
s_endpgm
.section .rodata,"a"
.p2align 6
.amdhsa_kernel {NAME}
  .amdhsa_next_free_vgpr 256
  .amdhsa_next_free_sgpr 102
  .amdhsa_accum_offset 256
  .amdhsa_group_segment_fixed_size 0
  .amdhsa_kernarg_size 88
  .amdhsa_user_sgpr_count 2
  .amdhsa_user_sgpr_kernarg_segment_ptr 1
  .amdhsa_system_sgpr_workgroup_id_x 1
  .amdhsa_float_denorm_mode_32 3
.end_amdhsa_kernel
'''
open(OUT, 'w').write(text)
if STAMPS: open(OUT + '.stamps', 'w').write('\n'.join(stamp_names))
print('instructions', len(main) + len(B.ins), 'problems', len(probs))
```

```python
import sys, struct
from asmk import Asm, check

NAME = "parallel_sum__sliding_block__mixer_channel_mlp__prompt_kernel"
OUT = sys.argv[1]
def flag(n): return n in sys.argv
def opt(n, d): return int(sys.argv[sys.argv.index(n) + 1]) if n in sys.argv else d
STAMPS, FORCE_FB, NOPF, NOROT, FEWST = map(flag, ('--stamps', '--force-fallback', '--nopf', '--norot', '--fewstamps'))
BA_AT, KV_AT, MAPUV, MAPP1, PUBK = opt('--ba', 1), opt('--kv', 6), opt('--mapuv', 0), opt('--mapp1', 0), opt('--pubk', 2)
HALF = flag('--half')
PK = not flag('--nopk')
S1POS = opt('--s1pos', 1)
TWO = flag('--two')
sBM, sBO2, sHM, sHO2 = 's6', 's7', 's8', 's9'
def f32(x): return '0x%08x' % struct.unpack('<I', struct.pack('<f', x))[0]

KF, VF, OF, HF, FL = 0, 2 << 20, 4 << 20, 6 << 20, 12 << 20
FK, FH, FO = 0, 64, 128
RS = FL + 65536
ST = 13 << 20
WS_SIZE = 14 << 20
K1 = 1024
L_X, L_W0, L_C1 = 0, 64 * K1, 96 * K1
L_BIAS, L_SROW, L_SCOL1, L_ONES, L_SCOL0, L_QX = 144 * K1, 152 * K1, 152 * K1, 154 * K1, 155 * K1, 156 * K1
L_RA, L_RB = 48 * K1, 96 * K1
LDS_BYTES = 160 * K1
REDP = 272
S_X, S_WQ, S_W2, S_WO, S_WS, S_OUT, S_C1, S_B, S_DBG = [f's[{b}:{b+3}]' for b in range(28, 64, 4)]
def srd(name): return int(name[2:name.index(':')])
(sW, sRB, sJ, sRT, sCT, sSW, sTS, sU, sV, sKQ, sCH, sTMAX, sSPIN, sKB, sC1M, sM11, sM10, sFLG,
 sT0, sT1) = [f's{i}' for i in range(64, 84)]
sNON = 's[84:85]'; sNL, sNH = 's84', 's85'
sT2, sT3, sT4, sD0, sBO, sBS, sBE, sWOO, sBL, sHO = [f's{i}' for i in range(86, 96)]
sSTMP = 's[96:97]'; sST0 = 's[98:99]'; sHS, sHE = 's100', 's101'
sM1, sM2, sM3, sCMP = 's[4:5]', 's[6:7]', 's[8:9]', 's[10:11]'
sKV0, sKV1, sKV2, sKVL, sOO, sOB, sOUT, sOST, sHST = 's12', 's13', 's14', 's15', 's16', 's17', 's18', 's19', 's20'
sA0, sA1, sA2 = 's21', 's4', 's5'
def vr(b, n=1): return f'v{b}' if n == 1 else f'v[{b}:{b+n-1}]'
vL16, vBDMA, vSTMP, vNON = 1, 2, 3, 4
t0, t1, t2 = 6, 7, 8
vK0, vK1, vIRR = 9, 10, 11
vXD0, vXD1, vWD, vC1D0, vC1D1, vB1, vR1 = 12, 13, 14, 15, 16, 17, 19
vXA, vWA, vU0, vU1A, vU1B, vT, vF, vSEL, vCS0, vCS1, vRS, vSQ, vWB = 20, 24, 28, 32, 36, 40, 44, 52, 56, 60, 64, 68, 72
vAC0, vAC1, vXF = 96, 112, 128
vPKA, vPHA, vPOA, vLB4, vLB5, vKA, vVA, vVST = 20, 21, 22, 23, 24, 25, 26, 27
vL16B, vROW, vRED = 12, 13, 14
vPK = 64
vBIA = 28
vQ, vKB, vVB, vS0, vP, vO = 44, 48, 56, 72, 104, 112
vBF = 160
vCB = 136
vAS = [29, 30, 31]; vPD = 32
vAB, vBD, vXR, vB2, vE = 72, 128, 152, 156, 36

XDROP = sys.argv[sys.argv.index('--xdrop') + 1].split(',') if '--xdrop' in sys.argv else []
PHASE = ['pro']
if XDROP:
    _c0 = Asm.__call__
    def drop(self, text, tag=None):
        ph = PHASE[0]; op = text.split()[0]
        if 'exp' in XDROP and ph == 'att' and op in ('v_exp_f32',): return
        if 'attall' in XDROP and ph == 'att' and (op in ('v_exp_f32', 'v_cvt_pk_bf16_f32') or op.startswith('v_mfma')): return
        if 'gelu' in XDROP and ph == 'gelu' and op in ('v_exp_f32', 'v_rcp_f32', 'v_pk_mul_f32', 'v_pk_fma_f32'): return
        if 'stat' in XDROP and ph in ('c0', 'c1') and (op.startswith('v_mfma_f32_4x4') or op.startswith('v_mfma_f32_16x16')): return
        if 'c0m' in XDROP and ph == 'c0' and op.startswith('v_mfma'): return
        if 'c1m' in XDROP and ph == 'c1' and op.startswith('v_mfma'): return
        if 't4m' in XDROP and ph == 't4' and op.startswith('v_mfma'): return
        if 'poll' in XDROP and op in ('s_cbranch_vccnz',): return
        if 'guard' in XDROP and 'L_fallback' in text and op.startswith('s_cbranch'): return
        if 'bdma' in XDROP and tag and tag[0] == 'b' and tag not in ('b1', 'b8') and op.startswith('buffer'):
            self.vm.append((tag, 1 << 30)); return
        if 'adma' in XDROP and tag and tag[0] == 'a' and op.startswith('buffer'):
            self.vm.append((tag, 1 << 30)); return
        if tag and ('T' + tag) in XDROP and op.startswith('buffer'):
            self.vm.append((tag, 1 << 30)); return
        if tag == 'bA' and 'bAhalf' in XDROP and op.startswith('buffer'):
            PHASE.append(0)
            if len(PHASE) % 2:
                self.vm.append((tag, 1 << 30)); return
        if 'kvdma' in XDROP and tag == 'kv' and op.startswith('buffer'):
            self.vm.append((tag, 1 << 30)); return
        if 'st' in XDROP and tag in ('hst', 'ost', 'kvst'):
            self.vm.append((tag, 1 << 30)); return
        _c0(self, text, tag)
    Asm.__call__ = drop
A = Asm()
nstamp = [0]; stamp_names = []
ONLY = sys.argv[sys.argv.index('--only') + 1].split(',') if '--only' in sys.argv else None
POOL = [96, 24, 0]; PEND = []
def harvest():
    for pair, idx in PEND:
        A(f's_sub_u32 s{pair}, s{pair}, s98'); A(f'v_writelane_b32 v{vSTMP}, s{pair}, {idx}'); POOL.append(pair)
    PEND.clear()
def stamp(name, force=False):
    if not STAMPS or (ONLY and name not in ONLY and name != 'end'): return
    early = name in ('karg', 'dma0')
    if not POOL or (early and PEND): A('s_waitcnt lgkmcnt(0)'); harvest()
    pair = 96 if early else POOL[-1]
    POOL.remove(pair)
    A(f's_mem{"real" if flag("--rt") else ""}time s[{pair}:{pair+1}]'); PEND.append((pair, nstamp[0]))
    nstamp[0] += 1; stamp_names.append(name)
    if force or early: A('s_waitcnt lgkmcnt(0)'); harvest()
PROBE = sys.argv[sys.argv.index('--probe') + 1].split(':') if '--probe' in sys.argv else None
if PROBE:
    _call = Asm.__call__; seen = [0]
    def call2(self, text, tag=None):
        if tag == PROBE[0] and seen[0] == 0 and self is A: seen[0] = -1; stamp('p_first', True); seen[0] = 0
        _call(self, text, tag)
        if tag == PROBE[0] and self is A and seen[0] >= 0:
            seen[0] += 1
            if seen[0] == int(PROBE[1]):
                m0save = 's3'
                stamp('p_issued', True); _call(self, 's_waitcnt vmcnt(0)'); stamp('p_done', True)
    Asm.__call__ = call2
_wait = A.wait
def wait2(vm=None, lg=None):
    _wait(vm=vm, lg=lg)
    if lg == 0 and PEND and not A._opt: harvest()
A.wait = wait2
def bc(r):
    return vr(r & ~1, 2), r & 1
def pk_mul_bc(d, a, r):
    p, h = bc(r); A(f'v_pk_mul_f32 {vr(d,2)}, {vr(a,2)}, {p} op_sel:[0,{h}] op_sel_hi:[1,{h}]')
def scale(base, n, r, pk=True):
    if PK and pk:
        for i in range(0, n, 2): pk_mul_bc(base + i, base + i, r)
    else:
        for i in range(n): A(f'v_mul_f32 v{base+i}, v{r}, v{base+i}')
def mk_srd(name, plo, size):
    b = srd(name)
    A(f's_mov_b32 s{b}, s{plo}'); A(f's_and_b32 s{b+1}, s{plo+1}, 0xffff'); A(f's_mov_b32 s{b+2}, {size}'); A(f's_mov_b32 s{b+3}, 0x20000')
XA_NODMA, XA_NOBR, XA_NOBAR, XA_NOVM = map(flag, ('--xa-nodma', '--xa-nobr', '--xa-nobar', '--xa-novm'))
def dma(vaddr, srdn, soff, off=0, tag=None, sc1=False):
    if XA_NODMA and tag in ('bC1', 'bC2', 'bD'):
        A.vm.append((tag, 1 << 30)); return
    o = f' offset:{off}' if off else ''
    A(f'buffer_load_dwordx4 v{vaddr}, {srdn}, {soff} offen{o}{" sc1" if sc1 else ""} lds', tag=tag)
def poll_issue(vaddr, P, tag):
    A(f'buffer_load_dwordx2 {vr(P,2)}, v{vaddr}, {S_WS}, 0 offen sc1', tag=tag)
SPINS = []
def poll_finish(vaddr, P, tag):
    L = A.label('sp'); E = A.label('spe')
    A.wait(vm=tag)
    A(f'v_cmp_ne_u64 vcc, {sNON}, {vr(P,2)}')
    A(f's_cbranch_vccnz {L}')
    A(f'{E}:')
    SPINS.append((L, E, vaddr, P))
def publish(phase):
    A('s_mov_b64 exec, 1')
    A(f'buffer_store_dwordx2 {vr(vNON,2)}, off, {S_WS}, {sFLG} offset:{phase} sc1', tag='flag')
    A('s_mov_b64 exec, -1')
FILL = []; VF_ = []
def fill(n=1):
    for _ in range(n):
        if FILL: FILL.pop(0)()
def flush(): fill(len(FILL))
class Defer:
    def __call__(self, t): VF_.append(t)
D = Defer()
def vfill(n):
    for _ in range(n):
        if VF_: A(VF_.pop(0))
def vflush(): vfill(len(VF_))

if STAMPS: A(f's_mem{"real" if flag("--rt") else ""}time {sST0}'); A('s_memrealtime s[100:101]')
if opt('--deadline', 0): A('s_memrealtime s[2:3]' if False else 's_memrealtime s[98:99]')
A('s_load_dwordx16 s[4:19], s[0:1], 0'); A('s_load_dwordx4 s[20:23], s[0:1], 64'); A('s_load_dwordx2 s[24:25], s[0:1], 80')
A('s_cmp_ge_u32 s2, 256'); A('s_cbranch_scc1 L_end')
A('v_lshrrev_b32 v1, 6, v0'); A('v_and_b32 v0, 63, v0'); A(f'v_readfirstlane_b32 {sW}, v1')
A(f's_and_b32 {sT0}, s2, 7'); A(f's_lshr_b32 {sT1}, s2, 3')
vPF = 100
if not NOPF:
    b = srd(S_B)
    A(f's_getpc_b64 s[{b}:{b+1}]'); A('L_pc:'); A(f's_and_b32 s{b+1}, s{b+1}, 0xffff'); A(f's_mov_b32 s{b+2}, L_codeend-L_pc'); A(f's_mov_b32 s{b+3}, 0x20000')
    A(f's_and_b32 {sT2}, {sT1}, 7'); A(f's_lshl_b32 {sT2}, {sT2}, 3'); A(f's_add_u32 {sT2}, {sT2}, {sW}'); A(f's_lshl_b32 {sT2}, {sT2}, 9')
    A(f'v_lshlrev_b32 v{vPF}, 7, v0')
    A('s_mov_b64 exec, 15')
    A(f'buffer_load_dword v{vPF}, v{vPF}, {S_B}, {sT2} offen', tag='pf')
    A('s_mov_b64 exec, -1')
if MAPP1 == 0:
    A(f's_and_b32 {sRB}, {sT0}, 1'); A(f's_lshl_b32 {sRB}, {sRB}, 3'); A(f's_and_b32 {sT2}, {sT1}, 7'); A(f's_add_u32 {sRB}, {sRB}, {sT2}')
    A(f's_lshr_b32 {sJ}, {sT0}, 1'); A(f's_lshl_b32 {sJ}, {sJ}, 2'); A(f's_lshr_b32 {sT3}, {sT1}, 3'); A(f's_add_u32 {sJ}, {sJ}, {sT3}')
    if HALF: A(f's_add_u32 {sKB}, {sT3}, {sT2}')
    else: A(f's_lshl_b32 {sKB}, {sT3}, 1'); A(f's_add_u32 {sKB}, {sKB}, {sT2}')
else:
    A(f's_and_b32 {sRB}, {sT0}, 3'); A(f's_lshl_b32 {sRB}, {sRB}, 2'); A(f's_and_b32 {sT2}, {sT1}, 3'); A(f's_add_u32 {sRB}, {sRB}, {sT2}')
    A(f's_lshr_b32 {sJ}, {sT0}, 2'); A(f's_lshl_b32 {sJ}, {sJ}, 3'); A(f's_lshr_b32 {sT3}, {sT1}, 2'); A(f's_add_u32 {sJ}, {sJ}, {sT3}')
    if HALF: A(f's_add_u32 {sKB}, {sT3}, {sT2}')
    else: A(f's_lshl_b32 {sKB}, {sT2}, 1'); A(f's_add_u32 {sKB}, {sKB}, {sT3}')
A(f's_and_b32 {sKB}, {sKB}, {3 if HALF else 7}'); A(f's_lshl_b32 {sKB}, {sKB}, 7')
if STAMPS: A(f'v_mov_b32 v{vSTMP}, 0'); A('s_waitcnt lgkmcnt(0)'); A(f'v_writelane_b32 v{vSTMP}, s100, 62'); A('s_getreg_b32 s100, hwreg(HW_REG_XCC_ID)'); A(f'v_writelane_b32 v{vSTMP}, s100, 61'); A('s_getreg_b32 s100, hwreg(HW_REG_HW_ID)'); A(f'v_writelane_b32 v{vSTMP}, s100, 60')
A('v_lshrrev_b32 v72, 3, v0'); A('v_lshrrev_b32 v73, 4, v0'); A('v_and_b32 v74, 7, v0')
A('v_xor_b32 v75, v74, v73'); A('v_lshlrev_b32 v75, 4, v75'); A(f'v_lshl_add_u32 v{vXD0}, v72, 10, v75')
A(f's_lshl_b32 {sT2}, {sRB}, 17'); A(f's_lshl_b32 {sT3}, {sW}, 14'); A(f's_add_u32 {sT2}, {sT2}, {sT3}'); A(f'v_add_u32 v{vXD0}, {sT2}, v{vXD0}')
A(f'v_xor_b32 v{vXD1}, 64, v{vXD0}'); A(f'v_add_u32 v{vXD1}, {8192-1024}, v{vXD1}')
A('v_and_b32 v73, 1, v73'); A('v_lshlrev_b32 v73, 2, v73'); A('v_xor_b32 v75, v74, v73'); A('v_lshlrev_b32 v75, 4, v75')
A(f's_and_b32 {sT2}, {sJ}, 1'); A(f's_lshl_b32 {sT2}, {sT2}, 10'); A(f's_lshr_b32 {sT3}, {sJ}, 1'); A(f's_lshl_b32 {sT3}, {sT3}, 7')
A(f's_add_u32 {sT2}, {sT2}, {sT3}'); A(f's_mul_i32 {sT3}, {sW}, {8*3072}'); A(f's_add_u32 {sT2}, {sT2}, {sT3}'); A(f's_add_u32 {sT2}, {sT2}, 1024')
A(f'v_mul_u32_u24 v{vWD}, 3072, v72'); A(f'v_add3_u32 v{vWD}, v{vWD}, v75, {sT2}')
A(f's_lshl_b32 {sM11}, {sW}, 11'); A(f's_lshl_b32 {sM10}, {sW}, 10')
sROW = sSPIN; sRSO = 's3'
A(f'v_lshlrev_b32 v{vL16}, 4, v0')
A(f's_lshl_b32 {sROW}, {sRB}, 4'); A(f's_add_u32 {sROW}, {sROW}, {sJ}'); A(f's_lshl_b32 {sROW}, {sROW}, 13'); A(f's_add_u32 {sROW}, {sROW}, {sM10}')
A('s_waitcnt lgkmcnt(0)')
stamp('karg')
mk_srd(S_X, 4, 2048 * 1024); mk_srd(S_WQ, 6, 512 * 3072)
def kb_next(s):
    A(f's_add_u32 {sKB}, {sKB}, 128'); A(f's_and_b32 {sKB}, {sKB}, {511 if HALF else 1023}')
    if HALF and 3 <= s <= 6: A(f's_or_b32 {sKB}, {sKB}, 512')
def q_c0(s):
    slot = s % 4
    def a():
        A(f's_add_u32 m0, {sM11}, {L_X + slot*16384}'); A(f's_mul_i32 {sD0}, {sKB}, 1536')
        dma(vXD0, S_X, sKB, 0, tag=f'c0s{s}')
    def b_(): dma(vXD1, S_X, sKB, 1024, tag=f'c0s{s}')
    def c():
        A(f's_add_u32 m0, {sM10}, {L_W0 + slot*8192}'); kb_next(s)
        dma(vWD, S_WQ, sD0, 0, tag=f'c0s{s}')
    FILL.extend([a, b_, c])
def q_c1(s):
    slot = s % 3
    def a():
        A(f's_add_u32 m0, {sM11}, {L_C1 + slot*16384}'); A(f's_mul_i32 {sD0}, {sKB}, {sC1M}')
        dma(vC1D0, S_C1, sD0, 0, tag=f'c1s{s}')
    def b_():
        dma(vC1D1, S_C1, sD0, 1024, tag=f'c1s{s}'); kb_next(s)
    FILL.extend([a, b_])
vXS = 124
A(f'buffer_load_dwordx4 {vr(vXS,4)}, v{vL16}, {S_X}, {sROW} offen', tag='xs')
q_c0(0); flush()
mk_srd(S_DBG, 22, 256)
A(f's_or_b32 {sT2}, s2, {sW}'); A(f's_cmp_eq_u32 {sT2}, 0'); A('s_cbranch_scc1 L_nonce')
A('L_nonce_ret:')
stamp('dma0')
if MAPUV == 0:
    A(f's_lshl_b32 {sU}, {sT0}, 2'); A(f's_and_b32 {sT2}, {sT1}, 3'); A(f's_add_u32 {sU}, {sU}, {sT2}'); A(f's_lshr_b32 {sV}, {sT1}, 2')
    A(f's_lshl_b32 {sWOO}, {sT2}, 1'); A(f's_add_u32 {sWOO}, {sWOO}, {sV}')
else:
    A(f's_lshr_b32 {sU}, {sT0}, 1'); A(f's_lshl_b32 {sU}, {sU}, 3'); A(f's_and_b32 {sT2}, {sT1}, 7'); A(f's_add_u32 {sU}, {sU}, {sT2}')
    A(f's_and_b32 {sV}, {sT0}, 1'); A(f's_lshl_b32 {sV}, {sV}, 2'); A(f's_lshr_b32 {sT3}, {sT1}, 3'); A(f's_add_u32 {sV}, {sV}, {sT3}')
    A(f's_lshl_b32 {sWOO}, {sT3}, 1'); A(f's_add_u32 {sWOO}, {sWOO}, {sT2}')
if NOROT: A(f's_mov_b32 {sWOO}, 0')
A(f's_and_b32 {sRT}, {sW}, 3'); A(f's_lshr_b32 {sCT}, {sW}, 2'); A(f's_lshl_b32 {sSW}, {sCT}, 1'); A(f's_xor_b32 {sSW}, {sSW}, {sRT}')
A(f's_and_b32 {sCH}, {sW}, 1'); A(f's_lshr_b32 {sKQ}, {sW}, 1')
A(f's_lshl_b32 {sTMAX}, {sRB}, 2'); A(f's_add_u32 {sTMAX}, {sTMAX}, {sRT}')
mk_srd(S_WS, 24, WS_SIZE)
A(f'v_lshl_add_u32 v{vBDMA}, v72, 10, v75')
A('v_and_b32 v73, 31, v0'); A('v_lshrrev_b32 v74, 5, v0')
A('v_bfe_u32 v75, v0, 1, 3'); A('v_xor_b32 v75, v75, v74'); A('v_lshlrev_b32 v75, 4, v75')
A(f's_lshl_b32 {sT0}, {sRT}, 12'); A(f's_lshl_b32 {sT1}, {sSW}, 5')
A('v_lshl_add_u32 v75, v73, 7, v75'); A(f'v_add_u32 v75, {sT0}, v75'); A(f'v_xor_b32 v{vXA}, {sT1}, v75')
for p in range(1, 4): A(f'v_xor_b32 v{vXA+p}, {p << 5}, v{vXA}')
def tr_lane_parts(E, r4, c4, chf, out, tmp):
    E(f'v_bfe_u32 v{r4}, v0, 2, 2'); E(f'v_and_b32 v{c4}, 3, v0'); E(f'v_bfe_u32 v{chf}, v0, 4, 1')
    E(f'v_lshrrev_b32 v{out}, 1, v{c4}'); E(f'v_lshl_add_u32 v{out}, v{chf}, 1, v{out}')
    E(f'v_bfe_u32 v{tmp}, v0, 3, 1'); E(f'v_lshlrev_b32 v{tmp}, 2, v{tmp}'); E(f'v_xor_b32 v{out}, v{out}, v{tmp}')
    E(f'v_lshlrev_b32 v{out}, 4, v{out}'); E(f'v_and_b32 v{tmp}, 1, v{c4}'); E(f'v_lshl_add_u32 v{out}, v{tmp}, 3, v{out}')
u = 112
tr_lane_parts(A, u, u + 1, u + 2, u + 3, u + 4)
A(f'v_lshl_add_u32 v{u+5}, v74, 3, v{u}')
A(f's_lshl_b32 {sT0}, {sCT}, 6'); A(f's_lshl_b32 {sT1}, {sSW}, 11'); A(f's_add_u32 {sT1}, {sT1}, {L_W0}')
A(f'v_xor_b32 v80, {sT0}, v{u+3}'); A(f'v_lshl_add_u32 v80, v{u+5}, 7, v80'); A(f'v_add_u32 v{vWA}, {sT1}, v80')
for p in range(1, 4): A(f'v_xor_b32 v{vWA+p}, {p << 11}, v{vWA}')
def non_load(): A(f'buffer_load_dwordx2 {vr(vNON,2)}, off, {S_DBG}, 0 sc1', tag='non')
if S1POS == 0: q_c0(1); flush(); non_load(); stamp('dma1')
A('v_and_b32 v75, 3, v0'); A('v_lshrrev_b32 v76, 2, v0'); A('v_lshrrev_b32 v77, 4, v0'); A('v_xor_b32 v76, v76, v77'); A('v_and_b32 v76, 1, v76'); A('v_or_b32 v75, v75, v76')
A('v_cmp_eq_u32 vcc, 0, v75'); A(f'v_mov_b32 v{vF}, 0x3f803f80'); A('s_nop 0')
for r in range(4): A(f'v_cndmask_b32 v{vSEL+r}, 0, v{vF}, vcc')
NEG = f32(-1e30)
class Group:
    def __call__(self, t):
        if t.startswith('s_cselect'): VF_[-1] += chr(10) + t
        else: VF_.append(t)
G = Group()
def mk_srd_d(name, plo, size):
    b = srd(name)
    G(f's_mov_b32 s{b}, s{plo}'); G(f's_and_b32 s{b+1}, s{plo+1}, 0xffff'); G(f's_mov_b32 s{b+2}, {size}'); G(f's_mov_b32 s{b+3}, 0x20000')
mk_srd_d(S_W2, 16, 1376 * 1024); mk_srd_d(S_WO, 8, 512 * 1024); mk_srd_d(S_OUT, 20, 2048 * 1024); mk_srd_d(S_B, 14, 1376 * 2)
G('s_mov_b32 s26, s18'); G('s_mov_b32 s27, s19')
G(f's_mul_i32 {sT0}, {sJ}, 3'); G(f's_lshl_b32 {sT1}, {sJ}, 1'); G(f's_add_u32 {sT1}, {sT1}, 11'); G(f's_min_u32 {sTS}, {sT0}, {sT1}')
b = srd(S_C1)
G(f's_mov_b32 {sT0}, {512*2752}'); G(f's_movk_i32 {sT1}, 1376')
G(f's_cmp_ge_u32 {sW}, 6')
G(f's_cselect_b32 s{b}, s6, s12'); G(f's_cselect_b32 s{b+1}, s7, s13'); G(f's_cselect_b32 s{b+2}, {512*3072}, {sT0}')
G(f's_cselect_b32 {sC1M}, 1536, {sT1}'); G(f's_cselect_b32 {sT3}, {sJ}, {sTS}'); G(f's_cselect_b64 {sCMP}, -1, 0')
G(f's_and_b32 s{b+1}, s{b+1}, 0xffff'); G(f's_mov_b32 s{b+3}, 0x20000'); G(f's_lshl_b32 {sT3}, {sT3}, 6')
G(f's_lshl_b32 {sT0}, {sW}, 7')
w = u + 6
for d, add in ((vC1D0, 0), (vC1D1, 64)):
    G(f'v_add_u32 v{w}, {sT0}, v0')
    if add: G(f'v_add_u32 v{w}, {add}, v{w}')
    G(f'v_mul_u32_u24 v{w+1}, 5462, v{w}'); G(f'v_lshrrev_b32 v{w+1}, 16, v{w+1}')
    G(f'v_mul_u32_u24 v{w+2}, 12, v{w+1}'); G(f'v_sub_u32 v{w+2}, v{w}, v{w+2}'); G(f'v_lshlrev_b32 v{w+2}, 4, v{w+2}')
    G(f'v_mul_u32_u24 v{w+1}, 2752, v{w+1}'); G(f'v_add_u32 v{d}, v{w+1}, v{w+2}')
assert all(c // 12 == (c * 5462) >> 16 for c in range(768))
G(f's_lshl_b32 {sT0}, {sCH}, 5')
G(f'v_lshrrev_b32 v{w}, 2, v0'); G(f'v_add_u32 v{w}, {sT0}, v{w}'); G(f'v_mul_u32_u24 v{w}, 3072, v{w}')
G(f'v_and_b32 v{w+1}, 3, v0'); G(f'v_lshl_add_u32 v{w}, v{w+1}, 4, v{w}'); G(f'v_add_u32 v{w+1}, {16*3072}, v{w}')
G(f'v_cndmask_b32 v{vC1D0}, v{vC1D0}, v{w}, {sCMP}'); G(f'v_cndmask_b32 v{vC1D1}, v{vC1D1}, v{w+1}, {sCMP}')
G(f'v_add_u32 v{vC1D0}, {sT3}, v{vC1D0}'); G(f's_sub_u32 {sT3}, {sT3}, 1024'); G(f'v_add_u32 v{vC1D1}, {sT3}, v{vC1D1}')
NV_C1D = len(VF_)
G(f'v_lshlrev_b32 v{u+3}, 5, v{u+2}'); G(f'v_lshl_add_u32 v{u+3}, v{u+1}, 3, v{u+3}')
G(f'v_mul_u32_u24 v{u+4}, 192, v{u+5}'); G(f'v_add_u32 v{u+4}, v{u+4}, v{u+3}')
G(f's_mov_b32 {sT0}, {L_C1+128}')
G(f's_cmp_eq_u32 {sCT}, 0'); G(f's_cselect_b32 {sT2}, 64, 192'); G(f's_cselect_b32 {sT3}, {L_C1+12288}, {sT0}')
G(f'v_mul_u32_u24 v{u+5}, {sT2}, v{u+5}'); G(f'v_add_u32 v{u+5}, v{u+5}, v{u+3}')
G(f's_lshl_b32 {sT4}, {sCT}, 6'); G(f's_add_u32 {sT4}, {sT4}, {L_C1}'); G(f'v_add_u32 v{u+4}, {sT4}, v{u+4}'); G(f'v_add_u32 v{u+5}, {sT3}, v{u+5}'); G(f's_lshl_b32 {sT4}, {sT2}, 2')
for p in range(4):
    G(f's_xor_b32 {sT0}, {sSW}, {p}'); G(f's_mul_i32 {sT1}, {sT0}, 3072'); G(f'v_add_u32 v{vU0+p}, {sT1}, v{u+4}')
    G(f's_mul_i32 {sT1}, {sT0}, {sT2}'); G(f's_lshl_b32 {sT1}, {sT1}, 4')
    G(f'v_add_u32 v{vU1A+p}, {sT1}, v{u+5}'); G(f'v_add_u32 v{vU1B+p}, {sT4}, v{vU1A+p}')
for r in range(1, 4): G(f'v_mov_b32 v{vF+r}, v{vF}')
G(f'v_add_u32 v{u}, {L_ONES}, v{vL16}'); G(f'ds_write_b128 v{u}, {vr(vF,4)}')
G(f'v_and_b32 v{u}, 31, v0'); G(f'v_lshrrev_b32 v{u+1}, 5, v0'); G(f'v_lshlrev_b32 v{u+1}, 2, v{u+1}'); G(f'v_sub_u32 v{u}, v{u}, v{u+1}')
G(f's_lshl_b32 {sT0}, {sRT}, 3'); G(f'v_subrev_u32 v{u}, {sT0}, v{u}')
G(f's_cmp_eq_u32 {sCT}, 0'); G(f's_cselect_b32 {sT0}, 0, {NEG}'); G(f's_cselect_b32 {sT1}, {NEG}, 0')
G(f'v_mov_b32 v{u+1}, {sT0}'); G(f'v_mov_b32 v{u+2}, {sT1}')
for i in range(4): G(f'v_cmp_le_i32 vcc, {i}, v{u}\ns_nop 1\nv_cndmask_b32 v{vF+4+i}, v{u+2}, v{u+1}, vcc')
G(f's_add_u32 {sT0}, {sM10}, {L_BIAS}'); G(f'v_add_u32 v{u}, {sT0}, v{vL16}'); G(f'ds_write_b128 v{u}, {vr(vF+4,4)}')
G(f's_lshl_b32 {sT2}, {sCH}, 13'); G(f's_lshl_b32 {sT3}, {sV}, 7'); G(f's_add_u32 {sT2}, {sT2}, {sT3}'); G(f'v_add_u32 v{vBDMA}, {sT2}, v{vBDMA}')
G(f's_mul_i32 {sBS}, {sKQ}, 22'); G(f's_cmp_eq_u32 {sKQ}, 3'); G(f's_cselect_b32 {sBS}, 65, {sBS}')
G(f's_cmp_ge_u32 {sKQ}, 2'); G(f's_cselect_b32 {sT2}, 21, 22'); G(f's_add_u32 {sBE}, {sBS}, {sT2}')
if TWO:
    G(f's_mul_i32 {sBO}, {sWOO}, 3'); G(f's_lshr_b32 {sBO}, {sBO}, 1'); G(f's_cmp_ge_u32 {sBO}, 12'); G(f's_cselect_b32 {sT3}, 12, 0'); G(f's_sub_u32 {sBO}, {sBO}, {sT3}')
    G(f's_sub_u32 {sT2}, {sT2}, 12')
    G(f's_mul_i32 {sBO2}, {sWOO}, 5'); G(f's_lshr_b32 {sBO2}, {sBO2}, 2'); G(f's_cmp_ge_u32 {sBO2}, {sT2}'); G(f's_cselect_b32 {sT2}, {sT2}, 0'); G(f's_sub_u32 {sBO2}, {sBO2}, {sT2}')
    G(f's_add_u32 {sBM}, {sBS}, 12'); G(f's_add_u32 {sBO2}, {sBO2}, {sBM}')
else:
    G(f's_mul_i32 {sBO}, {sWOO}, 11'); G(f's_lshr_b32 {sBO}, {sBO}, 2'); G(f's_cmp_ge_u32 {sBO}, {sT2}'); G(f's_cselect_b32 {sT2}, {sT2}, 0'); G(f's_sub_u32 {sBO}, {sBO}, {sT2}')
G(f's_add_u32 {sBO}, {sBO}, {sBS}')
G(f's_lshl_b32 {sT2}, {sU}, 1'); G(f's_add_u32 {sT2}, {sT2}, {sCH}')
G(f's_mul_i32 {sT3}, {sT2}, 86'); G(f's_add_u32 {sT3}, {sT3}, {HF >> 10}')
for d, s_ in ((sHO, sBO), (sHS, sBS), (sHE, sBE)) + (((sHM, sBM), (sHO2, sBO2)) if TWO else ()): G(f's_add_u32 {d}, {s_}, {sT3}'); G(f's_lshl_b32 {d}, {d}, 10')
for r in (sBO, sBS, sBE) + ((sBM, sBO2) if TWO else ()): G(f's_lshl_b32 {r}, {r}, 14')
G(f's_and_b32 {sWOO}, {sWOO}, 7'); G(f's_lshl_b32 {sOO}, {sWOO}, 10'); G(f's_lshl_b32 {sWOO}, {sWOO}, 14')
G(f's_lshl_b32 {sOB}, {sT2}, 5'); G(f's_lshl_b32 {sT3}, {sKQ}, 3'); G(f's_add_u32 {sOB}, {sOB}, {sT3}'); G(f's_lshl_b32 {sOB}, {sOB}, 10'); G(f's_add_u32 {sOB}, {sOB}, {OF}')
G(f's_mul_i32 {sBL}, {sKQ}, {12*K1}'); G(f's_lshl_b32 {sT3}, {sCH}, 10'); G(f's_add_u32 {sBL}, {sBL}, {sT3}')
G(f's_lshl_b32 {sFLG}, {sRB}, 4'); G(f's_add_u32 {sFLG}, {sFLG}, {sJ}'); G(f's_lshl_b32 {sFLG}, {sFLG}, 8'); G(f's_lshl_b32 {sT3}, {sW}, 3'); G(f's_add_u32 {sFLG}, {sFLG}, {sT3}'); G(f's_add_u32 {sFLG}, {sFLG}, {FL}')
G(f's_lshl_b32 {sT2}, {sCT}, 21'); G(f's_lshl_b32 {sT0}, {sJ}, 17'); G(f's_add_u32 {sT2}, {sT2}, {sT0}'); G(f's_lshl_b32 {sT0}, {sRT}, 10'); G(f's_add_u32 {sT2}, {sT2}, {sT0}')
G(f's_mul_i32 {sKVL}, {sCT}, {24*K1}'); G(f's_add_u32 {sKVL}, {sKVL}, {sT0}')
for d, r in enumerate((sKV0, sKV1)):
    G(f's_sub_u32 {r}, {sRB}, {2-d}'); G(f's_cselect_b32 {r}, {sRB}, {r}'); G(f's_lshl_b32 {r}, {r}, 12'); G(f's_add_u32 {r}, {r}, {sT2}')
G(f's_lshl_b32 {sKV2}, {sRB}, 12'); G(f's_add_u32 {sKV2}, {sKV2}, {sT2}')
G(f's_mul_i32 {sT2}, {sTMAX}, 86'); G(f's_add_u32 {sT0}, {sTS}, {sCT}'); G(f's_lshl_b32 {sT0}, {sT0}, 1'); G(f's_add_u32 {sT0}, {sT0}, {sT2}')
G(f's_lshl_b32 {sT0}, {sT0}, 10'); G(f's_add_u32 {sHST}, {sT0}, {HF}')
G(f's_lshl_b32 {sT2}, {sTMAX}, 5'); G(f's_lshl_b32 {sT0}, {sJ}, 1'); G(f's_add_u32 {sT2}, {sT2}, {sT0}'); G(f's_add_u32 {sT2}, {sT2}, {sCT}')
G(f's_lshl_b32 {sT2}, {sT2}, 10'); G(f's_add_u32 {sOST}, {sT2}, {OF}')
G(f's_lshl_b32 {sOUT}, {sU}, 16'); G(f's_lshl_b32 {sT0}, {sW}, 13'); G(f's_add_u32 {sOUT}, {sOUT}, {sT0}'); G(f's_lshl_b32 {sT0}, {sV}, 7'); G(f's_add_u32 {sOUT}, {sOUT}, {sT0}')
G(f's_lshl_b32 {sA1}, {sKQ}, 13'); G(f's_lshl_b32 {sA0}, {sCH}, 12'); G(f's_add_u32 {sA0}, {sA0}, {sA1}')
def q_b1():
    def a():
        A(f'v_and_b32 v{vB1+1}, 31, v0'); A(f'v_lshlrev_b32 v{vB1+1}, 1, v{vB1+1}')
        A(f's_add_u32 {sSPIN}, {sTS}, {sCT}'); A(f's_lshl_b32 {sSPIN}, {sSPIN}, 6')
        A(f'buffer_load_ushort v{vB1}, v{vB1+1}, {S_B}, {sSPIN} offen', tag='b1')
        A(f's_add_u32 {sSPIN}, {sTS}, 2'); A(f's_lshl_b32 {sSPIN}, {sSPIN}, 6'); A(f's_cmp_eq_u32 {sCT}, 0'); A(f's_cselect_b32 {sSPIN}, 0x10000, {sSPIN}')
        A(f'buffer_load_ushort v{vB1+1}, v{vB1+1}, {S_B}, {sSPIN} offen', tag='b1')
    FILL.append(a)
NV_ALL0 = len(VF_)
PRE = opt('--pre', 125)
vfill(PRE)
if S1POS == 1: q_c0(1); flush(); non_load(); stamp('dma1')
A.wait(vm='xs')
vU = 96
for r in range(4): A(f'v_lshlrev_b32 v{vU+2*r}, 16, v{vXS+r}'); A(f'v_and_b32 v{vU+2*r+1}, 0xffff0000, v{vXS+r}')
def wave_sum(r, t):
    for mod in ('quad_perm:[1,0,3,2]', 'quad_perm:[2,3,0,1]', 'row_half_mirror', 'row_mirror'):
        A('s_nop 1'); A(f'v_add_f32_dpp v{r}, v{r}, v{r} {mod} row_mask:0xf bank_mask:0xf')
    for op in ('v_permlane16_swap_b32', 'v_permlane32_swap_b32'):
        A(f'v_mov_b32 v{t}, v{r}'); A('s_nop 1'); A(f'{op} v{r}, v{t}'); A(f'v_add_f32 v{r}, v{r}, v{t}')
A(f'v_add_f32 v{vXS}, v{vU}, v{vU+1}')
for r in range(2, 8): A(f'v_add_f32 v{vXS}, v{vXS}, v{vU+r}')
wave_sum(vXS, vXS + 2)
A(f'v_mul_f32 v{vXS}, {f32(1/512)}, v{vXS}')
for r in range(8): A(f'v_sub_f32 v{vU+r}, v{vU+r}, v{vXS}')
A(f'v_mul_f32 v{vXS+1}, v{vU}, v{vU}')
for r in range(1, 8): A(f'v_fmac_f32 v{vXS+1}, v{vU+r}, v{vU+r}')
wave_sum(vXS + 1, vXS + 2)
A(f'v_mul_f32 v{vXS+1}, {f32(1/512)}, v{vXS+1}')
A(f's_lshr_b32 {sRSO}, {sROW}, 6'); A(f's_add_u32 {sRSO}, {sRSO}, {RS}')
vfill(opt('--pre2', 0))
q_c0(2); flush()
def publish_stats():
    A.wait(vm='non')
    A(f'v_readfirstlane_b32 {sNH}, v{vNON+1}'); A(f'v_readfirstlane_b32 {sNL}, v{vNON}')
    A(f's_cmp_eq_u32 {sNH}, 0'); A('s_cbranch_scc1 L_nonspin')
    A('L_nonspin_ret:')
    A(f'v_mov_b32 v{vXS+2}, v{vNON}'); A(f'v_mov_b32 v{vXS+3}, v{vNON+1}')
    A('s_mov_b64 exec, 1')
    A(f'buffer_store_dwordx4 {vr(vXS,4)}, off, {S_WS}, {sRSO} sc1', tag='rsst')
    A('s_mov_b64 exec, -1')
stamp('setup')
q_c0(3)
A.wait(lg=0)

def advance(p, cur, inc, S, M, E, O2):
    if p == 0: A('s_nop 0')
    elif TWO and p == 12: A(f's_mov_b32 {cur}, {O2}')
    else:
        lo, hi = ((S, M) if p < 12 else (M, E)) if TWO else (S, E)
        A(f's_add_u32 {cur}, {cur}, {inc}'); A(f's_cmp_eq_u32 {cur}, {hi}'); A(f's_cselect_b32 {cur}, {lo}, {cur}')
def q_b(p0, region, tag, n=6, base=None):
    for p in range(p0, p0 + n):
        def one(p=p):
            A(f's_add_u32 m0, {base or sBL}, {region + (p-p0)*2048}')
            if p < 22:
                advance(p, sBO, 16384, sBS, sBM, sBE, sBO2)
                dma(vBDMA, S_W2, sBO, 0, tag=tag)
            else:
                if p > 22: A(f's_add_u32 {sWOO}, {sWOO}, 16384'); A(f's_and_b32 {sWOO}, {sWOO}, 0x1ffff')
                A(f's_lshl_b32 {sD0}, {sKQ}, 17'); A(f's_or_b32 {sD0}, {sD0}, {sWOO}')
                dma(vBDMA, S_WO, sD0, 0, tag=tag)
        FILL.append(one)
def bf_reg(p): return vBF + 4 * p if p < 24 else vBD + 4 * (p - 24)
RF = []
def rfill(n):
    for _ in range(n):
        if RF: RF.pop(0)()
def b_reads(p0, region, tag, n=6, adj=None, queue=False, areg=None):
    a, o2 = (vLB4, 1024) if p0 < 22 else (vLB5, 512)
    r = t0 if areg is None else areg
    A(f'v_add_u32 v{r}, {region}, v{a}')
    if adj: A(f'v_subrev_u32 v{r}, {adj}, v{r}')
    for p in range(p0, p0 + n):
        for h in range(2):
            RF.append(lambda p=p, h=h: A(f'ds_read_b64_tr_b16 {vr(bf_reg(p)+2*h,2)}, v{r} offset:{(p-p0)*2048+h*o2}', tag=tag))
    if not queue: rfill(len(RF))

def kloop(pref, reads, mfmas, hook, prelast, last_reads, prebarrier=lambda s: None, nfill=lambda n: 1, nv=0):
    A.wait(vm=f'{pref}s0'); stamp(f'{pref}b0'); A('s_barrier')
    reads(0); reads(1)
    for n in range(31):
        if (n + 2) % 4 == 0:
            s = (n + 2) // 4
            if s == 8: prelast()
            A.wait(lg=0); mfmas(n)
            if s < 8: A.wait(vm=f'{pref}s{s}')
            prebarrier(s)
            if not FEWST or s in (1, 7): stamp(f'{pref}b{s}')
            A('s_barrier')
            if s < 8: reads(n + 2)
            else: last_reads(); mfmas(31); hook(8)
        else:
            if n % 4 != 3: A.wait(lg=f'{pref}r{n}')
            mfmas(n); reads(n + 2)
            if n % 4 == 3: hook((n + 1) // 4)
            k = nfill(n); had = len(FILL); fill(k)
            vfill(nv if had else 2 * nv)

vSQb, vSQc = vCS1, vF
def c0_reads(n):
    s, p = divmod(n, 4); slot = s % 4; wb = vWB + 4 * (n % 6); t = f'c0r{n}'
    A(f'ds_read_b128 {vr(vXF+4*n,4)}, v{vXA+p} offset:{L_X + slot*16384}', tag=t)
    A(f'ds_read_b64_tr_b16 {vr(wb,2)}, v{vWA+p} offset:{slot*8192}', tag=t)
    A(f'ds_read_b64_tr_b16 {vr(wb+2,2)}, v{vWA+p} offset:{slot*8192+512}', tag=t)
def c0_mfmas(n):
    p = n % 4; wb = vWB + 4 * (n % 6); x = vXF + 4 * n
    if p == 0: A(f'v_mfma_f32_16x16x32_bf16 {vr(vCS0,4)}, {vr(vSEL,4)}, {vr(wb,4)}, {0 if n == 0 else vr(vCS0,4)}')
    A(f'v_mfma_f32_32x32x16_bf16 {vr(vAC0,16)}, {vr(wb,4)}, {vr(x,4)}, {0 if n == 0 else vr(vAC0,16)}')
def kloop4(pref, reads, mfmas, hook, prelast, last_reads):
    A.wait(vm=f'{pref}s0'); stamp(f'{pref}b0'); A('s_barrier')
    for n in range(4): reads(n)
    for n in range(30):
        A.wait(lg=f'{pref}r{n}'); mfmas(n)
        if n % 4 == 0 and n < 28:
            s = n // 4 + 1
            A.wait(vm=f'{pref}s{s}')
            if not FEWST or s in (1, 7): stamp(f'{pref}b{s}')
            A('s_barrier'); reads(n + 4); hook(s)
        else:
            if n + 4 < 32: reads(n + 4)
            if n == 28: hook(8)
            fill(-(-len(FILL) // (4 - n % 4)) if n % 4 else 1); vfill(opt('--nv0', 5) if n < 24 else 8)
    A.wait(lg=0); mfmas(30); prelast(); mfmas(31); A.wait(lg=0); stamp(f'{pref}b8'); A('s_barrier'); last_reads()
EPS = f32(1e-5)
GC0 = -2.0 * 1.4426950408889634 * 0.7978845608028654
m, var = vRS, vRS + 1
GR_AT, TOK_AT = opt('--gr', 5), opt('--tok', 7)
def token_side():
    L = A.label('gs'); SPINS4.append(L)
    A.wait(vm='gr')
    A(f'v_cmp_ne_u64 vcc, {sNON}, {vr(vRS+2,2)}'); A(f's_cbranch_vccnz {L}'); A(f'{L}r:')
    D(f'v_add_f32 v{vSQ}, {EPS}, v{var}'); D(f'v_sub_f32 v{m}, 0, v{m}')
    D(f'v_rsq_f32 v{vR1}, v{vSQ}'); D(f'v_cvt_pk_bf16_f32 v{vT}, v{m}, v{m}')
    D(f'v_mul_f32 v{vSQ}, v{var}, v{vR1}'); D(f'v_mov_b32 v{vSQ+1}, {EPS}'); D(f'v_and_b32 v{vT}, 0xffff0000, v{vT}')
    D(f'v_fma_f32 v{vSQ}, v{vSQ}, v{vR1}, v{vSQ+1}'); D(f'v_sub_f32 v{vT}, v{m}, v{vT}'); D(f'v_rsq_f32 v{vSQ}, v{vSQ}')
    D(f'v_cvt_pk_bf16_f32 v{vT}, v{m}, v{vT}'); D(f'v_mul_f32 v{vSQ}, v{vSQ}, v{vR1}'); D(f'v_rcp_f32 v{vIRR}, v{vSQ}')
    D(f'v_mul_f32 v{vK0}, {f32(GC0)}, v{vSQ}'); D(f'v_mul_f32 v{vK1}, v{vSQ}, v{vSQ}'); D(f'v_mul_f32 v{vK1}, v{vK1}, v{vK0}'); D(f'v_mul_f32 v{vK1}, {f32(0.044715)}, v{vK1}')
    D(f'v_cvt_pk_bf16_f32 v{vT+1}, v{m}, v{vIRR}'); D(f'v_and_b32 v{vT+2}, 0xffff0000, v{vT+1}'); D(f'v_sub_f32 v{vT+2}, v{vIRR}, v{vT+2}'); D(f'v_cvt_pk_bf16_f32 v{vT+2}, v{vT+2}, 0')
    D(f'v_mov_b32 v{vT+3}, 0')
    D('s_mov_b32 exec_lo, 0\n' + '\n'.join(f'v_mov_b32 v{vT+r}, 0' for r in range(3)) + '\ns_mov_b32 exec_lo, -1')
    D(f'v_and_b32 v{t0}, 31, v0'); D(f'v_lshrrev_b32 v{t1}, 5, v0'); D(f'v_lshlrev_b32 v{t0}, 5, v{t0}'); D(f'v_lshl_add_u32 v{t0}, v{t1}, 4, v{t0}')
    D(f's_bitcmp1_b32 {sJ}, 0\ns_cselect_b64 {sCMP}, -1, 0\ns_cselect_b32 {sT0}, {VF}, {KF}')
    D(f's_lshr_b32 {sT1}, {sJ}, 1'); D(f's_lshl_b32 {sT1}, {sT1}, 1'); D(f's_add_u32 {sT1}, {sT1}, {sCT}'); D(f's_lshl_b32 {sT1}, {sT1}, 17')
    D(f'v_cndmask_b32 v{t0}, v{vL16}, v{t0}, {sCMP}')
    D(f's_add_u32 {sT0}, {sT0}, {sT1}'); D(f's_lshl_b32 {sT1}, {sTMAX}, 10'); D(f's_add_u32 {sT0}, {sT0}, {sT1}'); D(f's_add_u32 {sT1}, {sT0}, 65536')
SPINS4 = []
vGA = vSQ + 2
def c0_hook(s):
    assert s == 1 or not FILL
    if 2 <= s <= 5: q_c0(s + 2)
    elif s in (6, 7): q_c1(s - 6)
    if s == 1:
        def a():
            A(f'v_and_b32 v{t0}, 31, v0')
            A(f's_lshl_b32 {sSPIN}, {sCT}, 9'); A(f's_lshl_b32 {sA2}, {sRT}, 2'); A(f's_add_u32 {sSPIN}, {sSPIN}, {sA2}'); A(f's_add_u32 {sSPIN}, {sSPIN}, {L_SCOL0}')
            A(f'v_lshl_add_u32 v{t2}, v{t0}, 4, {sSPIN}'); A(f'v_subrev_u32 v{vGA+1}, {sA2}, v{t2}')
            A(f's_lshl_b32 {sSPIN}, {sTMAX}, 9'); A(f's_add_u32 {sSPIN}, {sSPIN}, {RS}'); A(f'v_lshl_add_u32 v{vGA}, v{t0}, 4, {sSPIN}')
        FILL.append(a)
    if s == opt('--pubs', 1): FILL.append(publish_stats)
    if s == 6: assert NV_ALL0 - len(VF_) >= NV_C1D, (NV_ALL0, len(VF_)); q_b1()
    if s == GR_AT: A(f'buffer_load_dwordx4 {vr(vRS,4)}, v{vGA}, {S_WS}, 0 offen sc1', tag='gr')
    if s == TOK_AT: vflush(); token_side()
def c0_prelast():
    flush(); vflush()
    A(f'ds_write_b32 v{t2}, v{vCS0}', tag='st')
def c0_lastreads():
    A(f'ds_read_b128 {vr(vCS1,4)}, v{vGA+1}', tag='str')
PHASE[0] = 'c0'
kloop4('c0', c0_reads, c0_mfmas, c0_hook, c0_prelast, c0_lastreads)

PHASE[0] = 'e0'
def feat_frag(F, C, b1):
    A(f'v_add_f32 v{C}, v{C}, v{C+1}'); A(f'v_add_f32 v{C+2}, v{C+2}, v{C+3}'); A(f'v_add_f32 v{C}, v{C}, v{C+2}')
    A(f'v_cvt_pk_bf16_f32 v{F}, v{C}, v{C}'); A(f'v_and_b32 v{C+1}, 0xffff0000, v{F}'); A(f'v_sub_f32 v{C+1}, v{C}, v{C+1}')
    A(f'v_cvt_pk_bf16_f32 v{F+1}, v{C+1}, 0')
    if b1 is None: A(f'v_mov_b32 v{F+2}, 0')
    else: A(f'v_lshl_or_b32 v{F+1}, v{b1}, 16, v{F+1}'); A(f'v_mov_b32 v{F+2}, v{b1}')
    A(f'v_mov_b32 v{F+3}, 0')

A.wait(lg='str')
feat_frag(vF, vCS1, None)
A('s_nop 1')
A(f'v_mfma_f32_32x32x16_bf16 {vr(vAC0,16)}, {vr(vF,4)}, {vr(vT,4)}, {vr(vAC0,16)}')
A('s_nop 11')
scale(vAC0, 8, vR1)
for r in range(4): A(f'v_cvt_pk_bf16_f32 v{vAC0+r}, v{vAC0+2*r}, v{vAC0+2*r+1}')
A(f'buffer_store_dwordx4 {vr(vAC0,4)}, v{t0}, {S_WS}, {sT0} offen sc1', tag='kvst')
scale(vAC0 + 8, 8, vR1)
for r in range(4, 8): A(f'v_cvt_pk_bf16_f32 v{vAC0+r}, v{vAC0+2*r}, v{vAC0+2*r+1}')
A(f'buffer_store_dwordx4 {vr(vAC0+4,4)}, v{t0}, {S_WS}, {sT1} offen sc1', tag='kvst')
stamp('c0end')

a0, a1, a2, a3, a4 = 66, 67, 68, 69, 70
tr_lane_parts(D, a0, a1, a2, a3, a4)
D(f'v_lshrrev_b32 v{a4}, 5, v0')
D(f's_lshl_b32 {sT1}, {sCH}, 6'); D(f'v_xor_b32 v{a3}, {sT1}, v{a3}'); D(f's_mul_i32 {sT1}, {sKQ}, {12*K1}'); D(f'v_add_u32 v{a3}, {sT1}, v{a3}')
D(f'v_lshl_add_u32 v{vLB4}, v{a4}, 2, v{a0}'); D(f'v_lshl_add_u32 v{vLB4}, v{vLB4}, 7, v{a3}'); D(f'v_lshl_add_u32 v{vLB5}, v{a4}, 9, v{vLB4}')
D(f's_sub_u32 {sT0}, {sRB}, 2\ns_cselect_b32 {sT0}, {sRB}, {sT0}'); D(f's_sub_u32 {sT1}, {sRB}, 1\ns_cselect_b32 {sT1}, {sRB}, {sT1}')
D(f'v_mov_b32 v{vPKA}, {sRB}'); D(f'v_writelane_b32 v{vPKA}, {sT0}, 0'); D(f'v_writelane_b32 v{vPKA}, {sT1}, 1')
D(f's_and_b32 {sT0}, {sJ}, 14'); D(f's_add_u32 {sT0}, {sT0}, {sCT}'); D(f's_lshl_b32 {sT0}, {sT0}, 8')
D(f's_and_b32 {sT1}, {sJ}, 1'); D(f's_lshl_b32 {sT1}, {sT1}, 2'); D(f's_add_u32 {sT1}, {sT1}, {sRT}'); D(f's_lshl_b32 {sT1}, {sT1}, 3')
D(f's_add_u32 {sT0}, {sT0}, {sT1}'); D(f's_add_u32 {sT0}, {sT0}, {FL+FK}')
D(f'v_lshlrev_b32 v{vPKA}, 12, v{vPKA}'); D(f'v_add_u32 v{vPKA}, {sT0}, v{vPKA}')
D(f'v_add_u32 v{vL16B}, 0x10000, v{vL16}')
NV_KV = len(VF_)
D(f's_mul_i32 {sT0}, {sCT}, {12*K1}'); D(f's_lshl_b32 {sT1}, {sRT}, 10'); D(f's_add_u32 {sT0}, {sT0}, {sT1}')
D(f'v_add_u32 v{vKA}, {sT0}, v{vL16}')
D(f'v_lshlrev_b32 v{a3}, 7, v{a4}'); D(f'v_lshl_add_u32 v{a3}, v{a0}, 5, v{a3}'); D(f'v_lshl_add_u32 v{a3}, v{a1}, 3, v{a3}')
D(f's_add_u32 {sT0}, {sT0}, {24*K1+8*K1}'); D(f'v_add_u32 v{a3}, {sT0}, v{a3}')
D(f'v_and_b32 v{a0}, 15, v0'); D(f'v_lshlrev_b32 v{a0}, 3, v{a0}'); D(f'v_xor_b32 v{a4}, 1, v{a4}'); D(f'v_lshl_add_u32 v{a0}, v{a4}, 7, v{a0}'); D(f'v_add_u32 v{a0}, {L_ONES}, v{a0}')
D(f'v_cmp_eq_u32 {sCMP}, 0, v{a2}'); D(f'v_mov_b32 v{a4}, {-1024 & 0xffffffff}'); D('s_nop 0')
D(f'v_cndmask_b32 v{vVA}, v{a0}, v{a3}, {sCMP}'); D(f'v_cndmask_b32 v{vVST}, 0, v{a4}, {sCMP}')
D(f's_lshl_b32 {sT0}, {sU}, 1'); D(f's_add_u32 {sT0}, {sT0}, {sCH}')
D(f's_lshr_b32 {sT1}, {sT0}, 2'); D(f's_lshl_b32 {sT1}, {sT1}, 12'); D(f's_and_b32 {sT0}, {sT0}, 3'); D(f's_lshl_b32 {sT0}, {sT0}, 3'); D(f's_add_u32 {sT1}, {sT1}, {sT0}')
D(f's_add_u32 {sT1}, {sT1}, {FL+FH}')
D(f'v_and_b32 v{a1}, 1, v0'); D(f'v_lshlrev_b32 v{a1}, 5, v{a1}'); D(f'v_add_u32 v{a1}, {sT1}, v{a1}')
D(f'v_bfe_u32 v{a0}, v0, 1, 4'); D(f'v_lshl_add_u32 v{vPHA}, v{a0}, 8, v{a1}')
D(f's_lshl_b32 {sT0}, {sKQ}, 10'); D(f's_add_u32 {sT0}, {sT0}, {FO-FH}')
D(f'v_and_b32 v{a0}, 3, v{a0}'); D(f'v_lshl_add_u32 v{vPOA}, v{a0}, 8, v{a1}'); D(f'v_add_u32 v{vPOA}, {sT0}, v{vPOA}')
D(f'v_lshrrev_b32 v{a0}, 4, v0'); D(f'v_bfe_u32 v{a1}, v0, 3, 1'); D(f'v_lshl_add_u32 v{a2}, v{a1}, 2, v{a0}')
D(f'v_and_b32 v{a3}, 7, v0'); D(f'v_lshlrev_b32 v{a3}, 4, v{a3}'); D(f'v_lshl_add_u32 v{vROW}, v{a2}, 10, v{a3}')
D(f's_lshl_b32 {sT0}, {sW}, 2'); D(f'v_add_u32 v{a0}, {sT0}, v{a0}'); D(f'v_mul_u32_u24 v{a0}, {REDP}, v{a0}'); D(f'v_lshl_add_u32 v{a0}, v{a1}, 7, v{a0}')
D(f'v_and_b32 v{a1}, 3, v0'); D(f'v_lshl_add_u32 v{a0}, v{a1}, 5, v{a0}')
D(f'v_bfe_u32 v{a1}, v0, 2, 1'); D(f'v_mul_u32_u24 v{a1}, {32*REDP}, v{a1}'); D(f'v_add_u32 v{vRED}, v{a0}, v{a1}')
D(f'v_and_b32 v{t0}, 31, v0')
D(f's_lshl_b32 {sT0}, {sCT}, 10'); D(f's_lshl_b32 {sT1}, {sRT}, 2'); D(f's_add_u32 {sT0}, {sT0}, {sT1}'); D(f's_add_u32 {sT0}, {sT0}, {L_SCOL1}')
D(f'v_lshl_add_u32 v{t2}, v{t0}, 4, {sT0}'); D(f'v_subrev_u32 v{t1}, {sT1}, v{t2}')
for r in range(16): D(f'v_mov_b32 v{vCB+r}, 0')
NV_ALL = len(VF_)

def c1_reads(n):
    s, p = divmod(n, 4); slot = s % 3; wb = vWB + 8 * (n % 3); t = f'c1r{n}'; o = slot * 16384
    A(f'ds_read_b64_tr_b16 {vr(wb,2)}, v{vU0+p} offset:{o}', tag=t)
    A(f'ds_read_b64_tr_b16 {vr(wb+2,2)}, v{vU0+p} offset:{o+768}', tag=t)
    A(f'ds_read_b64_tr_b16 {vr(wb+4,2)}, v{vU1A+p} offset:{o}', tag=t)
    A(f'ds_read_b64_tr_b16 {vr(wb+6,2)}, v{vU1B+p} offset:{o}', tag=t)
def c1_mfmas(n):
    p = n % 4; wb = vWB + 8 * (n % 3); x = vXF + 4 * n; z = n == 0
    if p == 0:
        A(f'v_mfma_f32_16x16x32_bf16 {vr(vCS0,4)}, {vr(vSEL,4)}, {vr(wb,4)}, {0 if z else vr(vCS0,4)}')
        A(f'v_mfma_f32_16x16x32_bf16 {vr(vCS1,4)}, {vr(vSEL,4)}, {vr(wb+4,4)}, {0 if z else vr(vCS1,4)}')
    A(f'v_mfma_f32_32x32x16_bf16 {vr(vAC0,16)}, {vr(wb,4)}, {vr(x,4)}, {0 if z else vr(vAC0,16)}')
    A(f'v_mfma_f32_32x32x16_bf16 {vr(vAC1,16)}, {vr(wb+4,4)}, {vr(x,4)}, {0 if z else vr(vAC1,16)}')
BASCH = sys.argv[sys.argv.index('--basch') + 1] if flag('--basch') else '1111110'
assert sum(map(int, BASCH)) == 6
SPREAD = not flag('--lump'); BAQ = []; KVQ = []; KVN = opt('--kvn', 3)
q_c1(2)
def c1_hook(s):
    if s == PUBK: A.wait(vm='kvst'); publish(FK)
    if s + 2 <= 7:
        old = list(FILL); FILL.clear(); q_c1(s + 2); FILL.extend(old)
    if SPREAD:
        if s == 1:
            keep = list(FILL); FILL.clear(); q_b(0, L_RA, 'bA'); BAQ.extend(FILL); FILL[:] = keep
        for _ in range(int(BASCH[s - 1]) if s < 8 else 0): FILL.append(BAQ.pop(0))
    elif s == BA_AT: q_b(0, L_RA, 'bA')
    if s == KV_AT - opt('--kvlead', 2):
        assert NV_ALL - len(VF_) >= NV_KV
        FILL.append(lambda: poll_issue(vPKA, vPK, 'kvpoll'))
    if s == KV_AT:
        poll_finish(vPKA, vPK, 'kvpoll')
        for d, r in enumerate((sKV0, sKV1, sKV2)):
            for e in range(2):
                def a(d=d, r=r, e=e):
                    A(f's_add_u32 m0, {sKVL}, {d*4096+e*12*K1}'); A('s_nop 0')
                    dma(vL16B if e else vL16, S_WS, r, 0, tag='kv', sc1=True)
                KVQ.append(a)
    if KVQ and s < 8:
        for _ in range(min(KVN, len(KVQ)) if s < 7 else len(KVQ)): FILL.append(KVQ.pop(0))
    if s == 8:
        b_reads(0, L_RA, 'bra', queue=True, areg=34); q_b(6, L_RB, 'bB')
def c1_prebar(s):
    if s == 8: flush(); A.wait(vm='bA')
def c1_prelast():
    vflush()
    A(f'ds_write_b32 v{t2}, v{vCS0}', tag='st'); A(f'ds_write_b32 v{t2}, v{vCS1} offset:512', tag='st')
def c1_lastreads():
    A(f'ds_read_b128 {vr(vCS0,4)}, v{t1}', tag='str1'); A(f'ds_read_b128 {vr(vCS1,4)}, v{t1} offset:512', tag='str1')
PHASE[0] = 'c1'
kloop('c1', c1_reads, c1_mfmas, c1_hook, c1_prelast, c1_lastreads, c1_prebar, nfill=lambda n: -(-len(FILL) // {3: 3, 0: 2, 1: 1}[n % 4]), nv=opt('--nv', 5))

PHASE[0] = 'gelu'
PMB = flag('--pmb')
fill(2 if PMB else 1)
A.wait(lg='str1', vm='b1')
feat_frag(vF + 4, vCS1, vB1 + 1); feat_frag(vF, vCS0, vB1)
A(f'v_mfma_f32_32x32x16_bf16 {vr(vAC1,16)}, {vr(vF+4,4)}, {vr(vT,4)}, {vr(vAC1,16)}')
A(f'v_add_u32 v{vBIA}, {L_BIAS}, v{vL16}')
A(f'v_mfma_f32_32x32x16_bf16 {vr(vAC0,16)}, {vr(vF,4)}, {vr(vT,4)}, {vr(vAC0,16)}')
fill(2 if PMB else 1); rfill(4)
A(f'v_add_u32 v{vAS[0]}, {sA1}, v{vL16}'); A(f'v_add_u32 v{vAS[1]}, 0x10000, v{vAS[0]}')
A(f's_lshl_b32 {sT0}, {sRT}, 10'); A(f's_add_u32 {sT0}, {sT0}, {L_QX}'); A(f'v_add_u32 v{t2}, {sT0}, v{vL16}')
vGT = 128
def gelu_store(acc, off, slot=lambda g, k: None, pk=True):
    tmp = vGT
    (pK1, h1), (pK0, h0), (pI, hi) = bc(vK1), bc(vK0), bc(vIRR)
    for g in range(2):
        a = acc + 8 * g
        if PK and pk:
            for r in range(0, 8, 2): A(f'v_pk_mul_f32 {vr(tmp+r,2)}, {vr(a+r,2)}, {vr(a+r,2)}')
            for r in range(0, 8, 2): A(f'v_pk_fma_f32 {vr(tmp+r,2)}, {vr(tmp+r,2)}, {pK1}, {pK0} op_sel:[0,{h1},{h0}] op_sel_hi:[1,{h1},{h0}]')
            for r in range(0, 8, 2): A(f'v_pk_mul_f32 {vr(tmp+r,2)}, {vr(tmp+r,2)}, {vr(a+r,2)}')
        else:
            for r in range(8): A(f'v_mul_f32 v{tmp+r}, v{a+r}, v{a+r}')
            for r in range(8): A(f'v_fma_f32 v{tmp+r}, v{tmp+r}, v{vK1}, v{vK0}')
            for r in range(8): A(f'v_mul_f32 v{tmp+r}, v{tmp+r}, v{a+r}')
        slot(g, 0)
        for r in range(8): A(f'v_exp_f32 v{tmp+r}, v{tmp+r}')
        if PK and pk:
            for r in range(0, 8, 2): A(f'v_pk_fma_f32 {vr(tmp+r,2)}, {vr(tmp+r,2)}, {pI}, {pI} op_sel:[0,{hi},{hi}] op_sel_hi:[1,{hi},{hi}]')
        else:
            for r in range(8): A(f'v_fma_f32 v{tmp+r}, v{tmp+r}, v{vIRR}, v{vIRR}')
        slot(g, 1)
        for r in range(8): A(f'v_rcp_f32 v{tmp+r}, v{tmp+r}')
        if PK and pk:
            for r in range(0, 8, 2): A(f'v_pk_mul_f32 {vr(a+r,2)}, {vr(tmp+r,2)}, {vr(a+r,2)}')
        else:
            for r in range(8): A(f'v_mul_f32 v{a+r}, v{tmp+r}, v{a+r}')
        for r in range(4): A(f'v_cvt_pk_bf16_f32 v{a+r}, v{a+2*r}, v{a+2*r+1}')
        A(f'buffer_store_dwordx4 {vr(a,4)}, v{vL16}, {S_WS}, {sHST} offen offset:{off+1024*g} sc1', tag='hst')
PRIO = opt('--prio', 1)
Lqe = A.label('qe')
A(f's_cmp_lg_u32 {sCT}, 0'); A(f's_cbranch_scc1 {Lqe}')
A.opt_begin()
A(f'v_mul_f32 v{vR1}, {f32(0.25*1.4426950408889634)}, v{vR1}')
scale(vAC1, 16, vR1)
for r in range(4): A(f'v_cvt_pk_bf16_f32 v{vQ+r}, v{vAC1+2*r}, v{vAC1+2*r+1}')
for r in range(4): A(f'v_cvt_pk_bf16_f32 v{vAC1+r}, v{vAC1+8+2*r}, v{vAC1+8+2*r+1}')
A(f'ds_write_b128 v{t2}, {vr(vAC1,4)}', tag='qx')
A.opt_end()
A(f'{Lqe}:')
A('s_nop 1')
gelu_store(vAC0, 0, lambda g, k: (fill(), rfill(2)))
assert not FILL and not RF

A.wait(vm='bB' if PMB else 'kv', lg=0); stamp('pm'); A('s_barrier')
def Sb(t): return vS0 + 16 * (t & 1)
def k_read(t): A(f'ds_read_b128 {vr(vKB+4*(t&1),4)}, v{vKA} offset:{(8-t)*1024}', tag=f'kv{t-1}')
def v_read(t):
    vb = vVB + 8 * (t & 1)
    for q in range(4): A(f'ds_read_b64_tr_b16 {vr(vb+2*q,2)}, v{vVA} offset:{q*256}', tag=f'kv{t}')
def bias_read(tab, dst, tag):
    for g in range(4): A(f'ds_read_b128 {vr(dst+4*g,4)}, v{vBIA} offset:{(tab*4+g)*1024}', tag=tag)
k_read(0); bias_read(0, Sb(0), 'kv-1'); k_read(1); v_read(0)
Lg2 = A.label('g2')
A(f's_cmp_eq_u32 {sCT}, 0'); A(f's_cbranch_scc1 {Lg2}')
A.opt_begin()
A(f'ds_read_b128 {vr(vQ,4)}, v{t2}', tag='qr')
A.opt_end()
A(f's_cmp_ge_u32 {sJ}, 11'); A(f's_cbranch_scc1 {Lg2}')
A.opt_begin()
if PRIO: A('s_setprio 1')
gelu_store(vAC1, 2048, pk=not flag('--nopk2'))
if PRIO: A('s_setprio 0')
A.opt_end()
A(f'{Lg2}:')
stamp('gelu')
A.wait(lg=0)
A(f'v_mfma_f32_32x32x16_bf16 {vr(Sb(0),16)}, {vr(vKB,4)}, {vr(vQ,4)}, {vr(Sb(0),16)}')
if PMB: b_reads(6, L_RB, 'brb', queue=True, areg=34); rfill(6)
q_b(12, L_RA, 'bC1'); fill(1)
A('s_nop 3')
SB = [0, 4, 8, 12, 16, 20, 22, 26, 30]
def slot_of(u): return (u + 2) % 3
def q_a(u, masked=False):
    for q in range(SB[u + 1] - SB[u]):
        def one(q=q):
            A(f's_add_u32 m0, {sA0}, {slot_of(u)*32768 + q*1024}')
            if u < 6:
                advance(SB[u] + q, sHO, 1024, sHS, sHM, sHE, sHO2)
                if masked: A(f's_mov_b64 exec, {sEX}')
                dma(vL16, S_WS, sHO, 0, tag=f'a{u}', sc1=True)
                if masked: A('s_mov_b64 exec, -1')
            else:
                if SB[u] + q > 22: A(f's_add_u32 {sOO}, {sOO}, 1024'); A(f's_and_b32 {sOO}, {sOO}, 0x1fff')
                A(f's_add_u32 {sD0}, {sOO}, {sOB}')
                dma(vL16, S_WS, sD0, 0, tag=f'a{u}', sc1=True)
        FILL.append(one)
MASKS = []
def pv(t, g):
    vb = vVB + 8 * (t & 1) + 4 * g
    A(f'v_mfma_f32_32x32x16_bf16 {vr(vO,16)}, {vr(vb,4)}, {vr(vP+4*g,4)}, {0 if (t, g) == (0, 0) else vr(vO,16)}')
def tile(t, nf):
    cur, nxt = Sb(t), Sb(t + 1)
    A.wait(lg=f'kv{t}')
    if t < 7:
        L = A.label('msk'); MASKS.append((L, vCB))
        A(f's_cmp_eq_u32 {sTMAX}, {t}'); A(f's_cbranch_scc1 {L}'); A(f'{L}r:')
    elif t > 0: A('s_nop 0')
    if t > 0: pv(t - 1, 1)
    if t < 8: A(f'v_add_u32 v{vVA}, v{vVA}, v{vVST}')
    if t < 7:
        A(f'v_mfma_f32_32x32x16_bf16 {vr(nxt,16)}, {vr(vKB+4*((t+1)&1),4)}, {vr(vQ,4)}, {vr(vCB,16)}')
        k_read(t + 2)
    if t == 7: bias_read(1, nxt, 'b8')
    if t < 8: v_read(t + 1)
    for r in range(8): A(f'v_exp_f32 v{cur+r}, v{cur+r}')
    if t == 7:
        L = A.label('msk'); MASKS.append((L, nxt))
        A.wait(lg='b8')
        A(f's_cmp_le_u32 {sTMAX}, 7'); A(f's_cbranch_scc1 {L}'); A(f'{L}r:')
        A(f'v_mfma_f32_32x32x16_bf16 {vr(nxt,16)}, {vr(vKB,4)}, {vr(vQ,4)}, {vr(nxt,16)}')
    elif nf > 0 and FILL: fill()
    else: A('s_nop 0')
    rfill(NR)
    for r in range(4): A(f'v_cvt_pk_bf16_f32 v{vP+r}, v{cur+2*r}, v{cur+2*r+1}')
    for r in range(8, 12): A(f'v_exp_f32 v{cur+r}, v{cur+r}')
    pv(t, 0)
    rfill(NR)
    if nf > 1: fill()
    for r in range(12, 16): A(f'v_exp_f32 v{cur+r}, v{cur+r}')
    if nf > 2: fill()
    rfill(NR)
    for r in range(4): A(f'v_cvt_pk_bf16_f32 v{vP+4+r}, v{cur+8+2*r}, v{cur+8+2*r+1}')
X2, X3, PUBH, HP, NF, NR = opt('--x2', 4), opt('--x3', 5), opt('--pubh', 1), opt('--hp', 5), opt('--nf', 3), 7
X1 = 0 if PMB else 1
sEARLY = sA2; sEX = 's[22:23]'; sHO0 = sKV0
PHASE[0] = 'att'
for t in range(9):
    NR = -(-len(RF) // 3)
    tile(t, NF)
    assert not RF
    if t == 0 and not PMB: A.wait(vm='bB'); A('s_barrier'); b_reads(6, L_RB, 'brb', queue=True, areg=34)
    if t == X1: A.wait(lg='brb'); A('s_barrier'); q_b(18, L_RB, 'bC2', 4); q_b(22, L_RB + 8192, 'bW', 2)
    if t == PUBH: A.wait(vm='hst'); publish(FH)
    if t == X2:
        assert not FILL
        A.wait(vm='bC2'); A('s_barrier'); b_reads(12, L_RA, 'brc1', queue=True, areg=34); b_reads(18, L_RB, 'brc2', 4, queue=True, areg=35)
    if t == X3:
        A.wait(lg='brc2'); A('s_barrier'); q_b(24, L_RB, 'bD', 4)
        mk_srd(S_B, 26, 1024)
        A(f'v_and_b32 v{t1}, 7, v0'); A(f'v_lshlrev_b32 v{t1}, 4, v{t1}'); A(f's_lshl_b32 {sT0}, {sV}, 7')
    if t == HP: poll_issue(vPHA, vPD, 'hpoll')
    if t == HP + 1:
        A.wait(vm='hpoll')
        A(f'v_cmp_ne_u64 vcc, {sNON}, {vr(vPD,2)}'); A(f's_mov_b32 {sHO0}, {sHO}')
        A(f's_cmp_eq_u64 vcc, 0'); A(f's_cselect_b64 {sEX}, -1, 0'); A(f's_cselect_b32 {sEARLY}, 1, 0')
        keep = list(FILL); FILL.clear()
        q_a(0, masked=True); FILL.extend(keep)
    if t == 7:
        FILL.append(lambda: A(f'buffer_load_dwordx4 {vr(vXR,4)}, v{vROW}, {S_X}, {sOUT} offen', tag='xr'))
        FILL.append(lambda: A(f'buffer_load_dwordx4 {vr(vB2,4)}, v{t1}, {S_B}, {sT0} offen', tag='xr'))
    stamp(f'tile{t}')
A('s_nop 0'); A.wait(lg=0); pv(8, 1)
flush()
PHASE[0] = 'fin'
A(f's_mov_b32 {sT2}, {f32(2.0**-64) if not FORCE_FB else f32(2.0**100)}'); A(f's_mov_b32 {sT1}, {f32(2.0**64)}'); A('s_nop 9')
A(f'v_cmp_le_f32 vcc, {sT2}, v{vO+8}'); A(f'v_cmp_ge_f32 {sCMP}, {sT1}, v{vO+8}')
A(f's_and_b64 vcc, vcc, {sCMP}'); A('s_cmp_eq_u64 vcc, -1'); A('s_cbranch_scc0 L_fallback')
A('L_attfin:')
A(f'v_rcp_f32 v{t0}, v{vO+8}'); A('s_nop 0')
scale(vO, 8, t0)
for r in range(4): A(f'v_cvt_pk_bf16_f32 v{vP+r}, v{vO+2*r}, v{vO+2*r+1}')
A(f'buffer_store_dwordx4 {vr(vP,4)}, v{vL16}, {S_WS}, {sOST} offen sc1', tag='ost')

assert not FILL
stamp('ost')
T4M = 8
LATE = Asm(); LATE.nlabel = 2000
A_main = A
A('s_barrier')
A(f's_cmp_eq_u32 {sEARLY}, 0'); A('s_cbranch_scc1 L_late')
A('L_late_ret:')
A = LATE
A('L_late:'); A('s_waitcnt vmcnt(0)'); publish(FO); A(f's_mov_b32 {sHO}, {sHO0}')
poll_issue(vPHA, vPD, 'hp2'); poll_finish(vPHA, vPD, 'hp2')
q_a(0); flush(); A('s_waitcnt vmcnt(0)'); A('s_branch L_late_ret')
A = A_main
q_a(1); flush()
A.wait(vm='a0'); stamp('a0'); A('s_barrier')
def resid():
    for r in range(4):
        A(f'v_lshlrev_b32 v{vE+2*r}, 16, v{vXR+r}'); A(f'v_and_b32 v{vE+2*r+1}, 0xffff0000, v{vXR+r}')
        A(f'v_lshlrev_b32 v{vXR+r}, 16, v{vB2+r}'); A(f'v_and_b32 v{vB2+r}, 0xffff0000, v{vB2+r}')
        A(f'v_add_f32 v{vE+2*r}, v{vE+2*r}, v{vXR+r}'); A(f'v_add_f32 v{vE+2*r+1}, v{vE+2*r+1}, v{vB2+r}')
def stage_of(mm): return max(u for u in range(8) if SB[u] <= mm)
def a_reads(mm):
    u = stage_of(mm); ab = vAB + 8 * (mm % 3); q = mm - SB[u]; sl = slot_of(u); a, o = (vAS[0], sl * 32768) if sl < 2 else (vAS[1], 0)
    A(f'ds_read_b128 {vr(ab,4)}, v{a} offset:{o + q*1024}', tag=f'ar{mm}')
    A(f'ds_read_b128 {vr(ab+4,4)}, v{a} offset:{o + 4096 + q*1024}', tag=f'ar{mm}')
def a_mfmas(mm):
    ab = vAB + 8 * (mm % 3); bf = bf_reg(mm); z = mm == 0
    if mm == 21:
        Lk = A.label('k21'); A(f's_cmp_ge_u32 {sKQ}, 2'); A(f's_cbranch_scc1 {Lk}'); A.opt_begin()
    A(f'v_mfma_f32_32x32x16_bf16 {vr(vAC0,16)}, {vr(ab,4)}, {vr(bf,4)}, {0 if z else vr(vAC0,16)}')
    A(f'v_mfma_f32_32x32x16_bf16 {vr(vAC1,16)}, {vr(ab+4,4)}, {vr(bf,4)}, {0 if z else vr(vAC1,16)}')
    if mm == 21: A.opt_end(); A(f'{Lk}:')
a_reads(0); a_reads(1)
q_a(2)
A(f's_lshl_b32 {sT2}, {sKQ}, 13'); A(f's_sub_u32 {sT3}, {sBL}, {sT2}')
PHASE[0] = 't4'
for mm in range(29):
    if mm + 2 in SB:
        u = SB.index(mm + 2)
        flush()
        A.wait(lg=0); a_mfmas(mm)
        if u < 8: A.wait(vm=f'a{u}')
        if u == 1: publish(FO)
        stamp(f'a{u}')
        A('s_barrier')
        if u < 8: a_reads(mm + 2)
        else: a_mfmas(29)
        if u == 4: poll_finish(vPOA, vPD, 'opoll')
        if u + 2 <= 7:
            old = list(FILL); FILL.clear(); q_a(u + 2); FILL.extend(old); fill()
        if u == 1: q_b(28, L_BIAS, 'bD2', 2, base=sT3)
        if u == 2: b_reads(22, L_RB + 8192, 'brd', 2, queue=True, areg=34); b_reads(24, L_RB, 'brd', 4, queue=True, areg=35)
        if u == 4: b_reads(28, L_BIAS, 'brd2', 2, adj=sT2)
        if u == 3: resid()
        if u == 3: FILL.append(lambda: poll_issue(vPOA, vPD, 'opoll'))
    else:
        if mm + 1 not in SB: A.wait(lg=f'ar{mm}')
        a_mfmas(mm); a_reads(mm + 2); rfill(4); fill(2 if len(FILL) > 3 else 1)
PHASE[0] = 'red'
A(f's_mul_i32 {sT0}, {sW}, {32*REDP}'); A(f's_mov_b32 m0, {sT0}')
A('s_nop 8')
for r in range(32): A(f'ds_write_addtid_b32 v{vAC0+r} offset:{r*REDP}', tag='red')
A.wait(lg=0); stamp('redw'); A('s_barrier')
vR = 160
for q in range(4):
    A(f'ds_read_b128 {vr(vR+8*q,4)}, v{vRED} offset:{q*64*REDP}', tag=f'rr{q}'); A(f'ds_read_b128 {vr(vR+8*q+4,4)}, v{vRED} offset:{q*64*REDP+16}', tag=f'rr{q}')
for q in range(4):
    A.wait(lg=f'rr{q}')
    for r in range(0, 8, 2): A(f'v_pk_add_f32 {vr(vE+r,2)}, {vr(vE+r,2)}, {vr(vR+8*q+r,2)}')
for r in range(4): A(f'v_cvt_pk_bf16_f32 v{vE+r}, v{vE+2*r}, v{vE+2*r+1}')
A(f'buffer_store_dwordx4 {vr(vE,4)}, v{vROW}, {S_OUT}, {sOUT} offen {sys.argv[sys.argv.index("--outst")+1].replace("+"," ") if flag("--outst") else ""}', tag='out')
if STAMPS:
    stamp('end', True)
    A(f's_lshl_b32 {sT0}, s2, 3'); A(f's_add_u32 {sT0}, {sT0}, {sW}'); A(f's_lshl_b32 {sT0}, {sT0}, 8'); A(f's_add_u32 {sT0}, {sT0}, {ST}')
    A(f's_memrealtime {sSTMP}'); A('s_waitcnt lgkmcnt(0)'); A(f'v_writelane_b32 v{vSTMP}, s96, 63'); A(f'v_writelane_b32 v{vSTMP}, {sEARLY}, 59')
    A(f'v_lshlrev_b32 v{t0}, 2, v0'); A(f'buffer_store_dword v{vSTMP}, v{t0}, {S_WS}, {sT0} offen')
    if flag('--dbgout'):
        A(f'v_readlane_b32 {sT1}, v{vSTMP}, 62'); A(f's_sub_u32 s96, s96, {sT1}'); A(f'v_writelane_b32 v{vSTMP}, s96, 13')
        A(f's_cmp_eq_u32 s2, 40'); A(f's_cselect_b32 {sT0}, {sW}, 1'); A(f's_cmp_eq_u32 {sT0}, 0'); A(f's_cselect_b64 exec, 0x3fff, 0')
        A(f'buffer_store_dword v{vSTMP}, v{t0}, {S_DBG}, 0 offen offset:8')
if opt('--spin', 0):
    A(f's_mov_b32 {sT0}, {opt("--spin", 0)}'); A('L_spin:'); A('s_nop 15'); A(f's_sub_u32 {sT0}, {sT0}, 1'); A(f's_cmp_lg_u32 {sT0}, 0'); A('s_cbranch_scc1 L_spin')
if opt('--deadline', 0):
    A('L_dl:'); A('s_memrealtime s[96:97]'); A('s_waitcnt lgkmcnt(0)'); A('s_sub_u32 s96, s96, s98'); A(f's_cmp_lt_u32 s96, {opt("--deadline", 0)}'); A('s_cbranch_scc1 L_dl')
A('L_end:')
A('s_endpgm')
main = list(A.ins)

B = Asm(); B.nlabel = 1000
B('L_nonce:')
B(f's_memrealtime {sNON}'); B('s_waitcnt lgkmcnt(0)')
B(f's_or_b32 {sNH}, {sNH}, 0x80000000'); B(f'v_mov_b32 v96, {sNL}'); B(f'v_mov_b32 v97, {sNH}')
B('s_mov_b64 exec, 1')
B(f'buffer_store_dwordx2 v[96:97], off, {S_DBG}, 0 sc1')
B('s_mov_b64 exec, -1'); B('s_branch L_nonce_ret')
B('L_nonspin:')
B(f's_mov_b32 {sSPIN}, 0')
B('L_nonspin_l:')
B(f'buffer_load_dwordx2 {vr(vNON,2)}, off, {S_DBG}, 0 sc1')
B(f's_add_u32 {sSPIN}, {sSPIN}, 1'); B('s_waitcnt vmcnt(0)')
B(f'v_readfirstlane_b32 {sNH}, v{vNON+1}'); B(f'v_readfirstlane_b32 {sNL}, v{vNON}'); B(f's_cmp_ge_u32 {sSPIN}, 0x8000'); B('s_cbranch_scc1 L_nonspin_ret')
B(f's_cmp_eq_u32 {sNH}, 0'); B('s_cbranch_scc1 L_nonspin_l'); B('s_branch L_nonspin_ret')
for L in SPINS4:
    B(f'{L}:'); B(f's_mov_b32 {sSPIN}, 0'); B(f'{L}l:')
    B(f'buffer_load_dwordx4 {vr(vRS,4)}, v{vGA}, {S_WS}, 0 offen sc1')
    B(f's_add_u32 {sSPIN}, {sSPIN}, 1'); B('s_waitcnt vmcnt(0)')
    B(f'v_cmp_ne_u64 vcc, {sNON}, {vr(vRS+2,2)}')
    B(f's_cmp_ge_u32 {sSPIN}, 0x8000'); B(f's_cbranch_scc1 {L}r')
    B(f's_cbranch_vccnz {L}l'); B(f's_branch {L}r')
for L, E, vaddr, P in SPINS:
    B(f'{L}:'); B(f's_mov_b32 {sSPIN}, 0'); B(f'{L}l:')
    B(f'buffer_load_dwordx2 {vr(P,2)}, v{vaddr}, {S_WS}, 0 offen sc1')
    B(f's_add_u32 {sSPIN}, {sSPIN}, 1'); B('s_waitcnt vmcnt(0)')
    B(f'v_cmp_ne_u64 vcc, {sNON}, {vr(P,2)}')
    B(f's_cmp_ge_u32 {sSPIN}, 0x8000'); B(f's_cbranch_scc1 {E}')
    B(f's_cbranch_vccnz {L}l'); B(f's_branch {E}')
for L, dst in MASKS:
    B(f'{L}:'); B('s_nop 7')
    for r in range(16): B(f'v_mov_b32 v{dst+r}, {NEG}')
    B('s_nop 0'); B(f's_branch {L}r')
vKA2, vM, vVA2 = 128, 129, 130
S0, S1 = vS0, vS0 + 16
B('L_fallback:')
B(f's_min_u32 {sT4}, {sTMAX}, 8')
def fb_scores():
    L1 = B.label('fb')
    B(f'ds_read_b128 {vr(vKB,4)}, v{vKA2}'); B('s_waitcnt lgkmcnt(0)')
    B(f'v_mfma_f32_32x32x16_bf16 {vr(S0,16)}, {vr(vKB,4)}, {vr(vQ,4)}, 0')
    B(f's_and_b32 {sT1}, {sT3}, 7'); B(f's_cmp_lg_u32 {sT1}, 0'); B('s_nop 15'); B(f's_cbranch_scc1 {L1}')
    B(f's_lshl_b32 {sT1}, {sT3}, 9'); B(f'v_add_u32 v{vM+2}, {sT1}, v{vBIA}')
    for g in range(4): B(f'ds_read_b128 {vr(S1+4*g,4)}, v{vM+2} offset:{g*1024}')
    B('s_waitcnt lgkmcnt(0)')
    for r in range(16): B(f'v_add_f32 v{S0+r}, v{S0+r}, v{S1+r}')
    B(f'{L1}:')
B(f's_mov_b32 {sT3}, 0'); B(f'v_add_u32 v{vKA2}, 8192, v{vKA}'); B(f'v_mov_b32 v{vM}, {f32(-3e38)}')
La = B.label('fa'); B(f'{La}:')
fb_scores()
for r in range(8): B(f'v_max3_f32 v{vM}, v{vM}, v{S0+2*r}, v{S0+2*r+1}')
B(f'v_subrev_u32 v{vKA2}, 1024, v{vKA2}'); B(f's_add_u32 {sT3}, {sT3}, 1'); B(f's_cmp_le_u32 {sT3}, {sT4}'); B(f's_cbranch_scc1 {La}')
B(f'v_mov_b32 v{vM+3}, v{vM}'); B('s_nop 1'); B(f'v_permlane32_swap_b32 v{vM}, v{vM+3}'); B(f'v_max_f32 v{vM}, v{vM}, v{vM+3}')
B(f'v_lshlrev_b32 v{vVA2}, 3, v{vVST}'); B(f'v_sub_u32 v{vVA2}, v{vVA}, v{vVA2}')
B(f's_mov_b32 {sT3}, 0'); B(f'v_add_u32 v{vKA2}, 8192, v{vKA}')
for r in range(16): B(f'v_mov_b32 v{vO+r}, 0')
Lb = B.label('fbb'); B(f'{Lb}:')
for q in range(4): B(f'ds_read_b64_tr_b16 {vr(vVB+2*q,2)}, v{vVA2} offset:{q*256}')
fb_scores()
for r in range(16): B(f'v_sub_f32 v{S0+r}, v{S0+r}, v{vM}')
for r in range(16): B(f'v_exp_f32 v{S0+r}, v{S0+r}')
B('s_nop 0')
for r in range(8): B(f'v_cvt_pk_bf16_f32 v{vP+r}, v{S0+2*r}, v{S0+2*r+1}')
B('s_nop 1')
B(f'v_mfma_f32_32x32x16_bf16 {vr(vO,16)}, {vr(vVB,4)}, {vr(vP,4)}, {vr(vO,16)}')
B(f'v_mfma_f32_32x32x16_bf16 {vr(vO,16)}, {vr(vVB+4,4)}, {vr(vP+4,4)}, {vr(vO,16)}')
B(f'v_subrev_u32 v{vKA2}, 1024, v{vKA2}'); B(f'v_add_u32 v{vVA2}, v{vVA2}, v{vVST}')
B(f's_add_u32 {sT3}, {sT3}, 1'); B(f's_cmp_le_u32 {sT3}, {sT4}'); B(f's_cbranch_scc1 {Lb}')
B('s_nop 15'); B('s_branch L_attfin')
B.ins += LATE.ins
B('L_codeend:')

probs = check(main, True) + check(main, False) + check(B.ins, True)
for p in dict.fromkeys(probs): print(p, file=sys.stderr)

hdr = open('parallel_sum__sliding_block__mixer_channel_mlp__prompt.s.ref').read().split('; Override launch')[0]
text = hdr + f'''; @launch grid=(256,1,1) block=(512,1,1) lds={LDS_BYTES}
.amdgcn_target "amdgcn-amd-amdhsa--gfx950"
.text
.globl {NAME}
.p2align 8
.type {NAME},@function
{NAME}:
''' + A.text() + '\n' + B.text() + f'''
s_endpgm
.section .rodata,"a"
.p2align 6
.amdhsa_kernel {NAME}
  .amdhsa_next_free_vgpr 256
  .amdhsa_next_free_sgpr 102
  .amdhsa_accum_offset 256
  .amdhsa_group_segment_fixed_size 0
  .amdhsa_kernarg_size 88
  .amdhsa_user_sgpr_count 2
  .amdhsa_user_sgpr_kernarg_segment_ptr 1
  .amdhsa_system_sgpr_workgroup_id_x 1
  .amdhsa_float_denorm_mode_32 3
.end_amdhsa_kernel
'''
open(OUT, 'w').write(text)
if STAMPS: open(OUT + '.stamps', 'w').write('\n'.join(stamp_names))
print('instructions', len(main) + len(B.ins), 'problems', len(probs))
```

```python
import sys, struct
from asmk import Asm, check

NAME = "parallel_sum__sliding_block__mixer_channel_mlp__prompt_kernel"
OUT = sys.argv[1]
def flag(n): return n in sys.argv
def opt(n, d): return int(sys.argv[sys.argv.index(n) + 1]) if n in sys.argv else d
STAMPS, FORCE_FB, NOPF, NOROT, FEWST = map(flag, ('--stamps', '--force-fallback', '--nopf', '--norot', '--fewstamps'))
BA_AT, KV_AT, MAPUV, MAPP1, PUBK = opt('--ba', 1), opt('--kv', 6), opt('--mapuv', 0), opt('--mapp1', 0), opt('--pubk', 2)
HALF = flag('--half')
PK = not flag('--nopk')
S1POS = opt('--s1pos', 1)
TWO = flag('--two')
sBM, sBO2, sHM, sHO2 = 's6', 's7', 's8', 's9'
def f32(x): return '0x%08x' % struct.unpack('<I', struct.pack('<f', x))[0]

KF, VF, OF, HF, FL = 0, 2 << 20, 4 << 20, 6 << 20, 12 << 20
FK, FH, FO = 0, 64, 128
RS = FL + 65536
ST = 13 << 20
WS_SIZE = 14 << 20
K1 = 1024
L_X, L_W0, L_C1 = 0, 64 * K1, 96 * K1
L_BIAS, L_SROW, L_SCOL1, L_ONES, L_SCOL0, L_QX = 144 * K1, 152 * K1, 152 * K1, 154 * K1, 155 * K1, 156 * K1
L_RA, L_RB = 48 * K1, 96 * K1
LDS_BYTES = 160 * K1
REDP = 272
S_X, S_WQ, S_W2, S_WO, S_WS, S_OUT, S_C1, S_B, S_DBG = [f's[{b}:{b+3}]' for b in range(28, 64, 4)]
def srd(name): return int(name[2:name.index(':')])
(sW, sRB, sJ, sRT, sCT, sSW, sTS, sU, sV, sKQ, sCH, sTMAX, sSPIN, sKB, sC1M, sM11, sM10, sFLG,
 sT0, sT1) = [f's{i}' for i in range(64, 84)]
sNON = 's[84:85]'; sNL, sNH = 's84', 's85'
sT2, sT3, sT4, sD0, sBO, sBS, sBE, sWOO, sBL, sHO = [f's{i}' for i in range(86, 96)]
sSTMP = 's[96:97]'; sST0 = 's[98:99]'; sHS, sHE = 's100', 's101'
sM1, sM2, sM3, sCMP = 's[4:5]', 's[6:7]', 's[8:9]', 's[10:11]'
sKV0, sKV1, sKV2, sKVL, sOO, sOB, sOUT, sOST, sHST = 's12', 's13', 's14', 's15', 's16', 's17', 's18', 's19', 's20'
sA0, sA1, sA2 = 's21', 's4', 's5'
def vr(b, n=1): return f'v{b}' if n == 1 else f'v[{b}:{b+n-1}]'
vL16, vBDMA, vSTMP, vNON = 1, 2, 3, 4
t0, t1, t2 = 6, 7, 8
vK0, vK1, vIRR = 9, 10, 11
vXD0, vXD1, vWD, vC1D0, vC1D1, vB1, vR1 = 12, 13, 14, 15, 16, 17, 19
vXA, vWA, vU0, vU1A, vU1B, vT, vF, vSEL, vCS0, vCS1, vRS, vSQ, vWB = 20, 24, 28, 32, 36, 40, 44, 52, 56, 60, 64, 68, 72
vAC0, vAC1, vXF = 96, 112, 128
vPKA, vPHA, vPOA, vLB4, vLB5, vKA, vVA, vVST = 20, 21, 22, 23, 24, 25, 26, 27
vL16B, vROW, vRED = 12, 13, 14
vPK = 64
vBIA = 28
vQ, vKB, vVB, vS0, vP, vO = 44, 48, 56, 72, 104, 112
vBF = 160
vCB = 136
vAS = [29, 30, 31]; vPD = 32
vAB, vBD, vXR, vB2, vE = 72, 128, 152, 156, 36

XDROP = sys.argv[sys.argv.index('--xdrop') + 1].split(',') if '--xdrop' in sys.argv else []
PHASE = ['pro']
if XDROP:
    _c0 = Asm.__call__
    def drop(self, text, tag=None):
        ph = PHASE[0]; op = text.split()[0]
        if ('x16' + ph) in XDROP and op == 'v_mfma_f32_32x32x16_bf16':
            import re as _re
            d, a_, b_, c_ = [x.strip() for x in text.split(None, 1)[1].split(',')]
            lo = int(_re.match(r'v\[(\d+)', d).group(1)); PHASE.append(0); par = 8 * ((len(PHASE) // 2) % 2)
            for q in range(2):
                dd = f'v[{lo+par+4*q}:{lo+par+4*q+3}]'
                _c0(self, f'v_mfma_f32_16x16x32_bf16 {dd}, {a_}, {b_}, {dd}', tag)
            return
        if 'exp' in XDROP and ph == 'att' and op in ('v_exp_f32',): return
        if 'attall' in XDROP and ph == 'att' and (op in ('v_exp_f32', 'v_cvt_pk_bf16_f32') or op.startswith('v_mfma')): return
        if 'gelu' in XDROP and ph == 'gelu' and op in ('v_exp_f32', 'v_rcp_f32', 'v_pk_mul_f32', 'v_pk_fma_f32'): return
        if 'stat' in XDROP and ph in ('c0', 'c1') and (op.startswith('v_mfma_f32_4x4') or op.startswith('v_mfma_f32_16x16')): return
        if 'c0m' in XDROP and ph == 'c0' and op.startswith('v_mfma'): return
        if 'c1m' in XDROP and ph == 'c1' and op.startswith('v_mfma'): return
        if 't4m' in XDROP and ph == 't4' and op.startswith('v_mfma'): return
        if 'poll' in XDROP and op in ('s_cbranch_vccnz',): return
        if 'guard' in XDROP and 'L_fallback' in text and op.startswith('s_cbranch'): return
        if 'bdma' in XDROP and tag and tag[0] == 'b' and tag not in ('b1', 'b8') and op.startswith('buffer'):
            self.vm.append((tag, 1 << 30)); return
        if 'adma' in XDROP and tag and tag[0] == 'a' and op.startswith('buffer'):
            self.vm.append((tag, 1 << 30)); return
        if tag and ('T' + tag) in XDROP and op.startswith('buffer'):
            self.vm.append((tag, 1 << 30)); return
        if tag == 'bA' and 'bAhalf' in XDROP and op.startswith('buffer'):
            PHASE.append(0)
            if len(PHASE) % 2:
                self.vm.append((tag, 1 << 30)); return
        if 'kvdma' in XDROP and tag == 'kv' and op.startswith('buffer'):
            self.vm.append((tag, 1 << 30)); return
        if 'st' in XDROP and tag in ('hst', 'ost', 'kvst'):
            self.vm.append((tag, 1 << 30)); return
        _c0(self, text, tag)
    Asm.__call__ = drop
A = Asm()
nstamp = [0]; stamp_names = []
ONLY = sys.argv[sys.argv.index('--only') + 1].split(',') if '--only' in sys.argv else None
POOL = [96, 24, 0]; PEND = []
def harvest():
    for pair, idx in PEND:
        A(f's_sub_u32 s{pair}, s{pair}, s98'); A(f'v_writelane_b32 v{vSTMP}, s{pair}, {idx}'); POOL.append(pair)
    PEND.clear()
def stamp(name, force=False):
    if not STAMPS or (ONLY and name not in ONLY and name != 'end'): return
    early = name in ('karg', 'dma0')
    if not POOL or (early and PEND): A('s_waitcnt lgkmcnt(0)'); harvest()
    pair = 96 if early else POOL[-1]
    POOL.remove(pair)
    A(f's_mem{"real" if flag("--rt") else ""}time s[{pair}:{pair+1}]'); PEND.append((pair, nstamp[0]))
    nstamp[0] += 1; stamp_names.append(name)
    if force or early: A('s_waitcnt lgkmcnt(0)'); harvest()
PROBE = sys.argv[sys.argv.index('--probe') + 1].split(':') if '--probe' in sys.argv else None
if PROBE:
    _call = Asm.__call__; seen = [0]
    def call2(self, text, tag=None):
        if tag == PROBE[0] and seen[0] == 0 and self is A: seen[0] = -1; stamp('p_first', True); seen[0] = 0
        _call(self, text, tag)
        if tag == PROBE[0] and self is A and seen[0] >= 0:
            seen[0] += 1
            if seen[0] == int(PROBE[1]):
                m0save = 's3'
                stamp('p_issued', True); _call(self, 's_waitcnt vmcnt(0)'); stamp('p_done', True)
    Asm.__call__ = call2
_wait = A.wait
def wait2(vm=None, lg=None):
    _wait(vm=vm, lg=lg)
    if lg == 0 and PEND and not A._opt: harvest()
A.wait = wait2
def bc(r):
    return vr(r & ~1, 2), r & 1
def pk_mul_bc(d, a, r):
    p, h = bc(r); A(f'v_pk_mul_f32 {vr(d,2)}, {vr(a,2)}, {p} op_sel:[0,{h}] op_sel_hi:[1,{h}]')
def scale(base, n, r, pk=True):
    if PK and pk:
        for i in range(0, n, 2): pk_mul_bc(base + i, base + i, r)
    else:
        for i in range(n): A(f'v_mul_f32 v{base+i}, v{r}, v{base+i}')
def mk_srd(name, plo, size):
    b = srd(name)
    A(f's_mov_b32 s{b}, s{plo}'); A(f's_and_b32 s{b+1}, s{plo+1}, 0xffff'); A(f's_mov_b32 s{b+2}, {size}'); A(f's_mov_b32 s{b+3}, 0x20000')
XA_NODMA, XA_NOBR, XA_NOBAR, XA_NOVM = map(flag, ('--xa-nodma', '--xa-nobr', '--xa-nobar', '--xa-novm'))
def dma(vaddr, srdn, soff, off=0, tag=None, sc1=False):
    if XA_NODMA and tag in ('bC1', 'bC2', 'bD'):
        A.vm.append((tag, 1 << 30)); return
    o = f' offset:{off}' if off else ''
    A(f'buffer_load_dwordx4 v{vaddr}, {srdn}, {soff} offen{o}{" sc1" if sc1 else ""} lds', tag=tag)
def poll_issue(vaddr, P, tag):
    A(f'buffer_load_dwordx2 {vr(P,2)}, v{vaddr}, {S_WS}, 0 offen sc1', tag=tag)
SPINS = []
def poll_finish(vaddr, P, tag):
    L = A.label('sp'); E = A.label('spe')
    A.wait(vm=tag)
    A(f'v_cmp_ne_u64 vcc, {sNON}, {vr(P,2)}')
    A(f's_cbranch_vccnz {L}')
    A(f'{E}:')
    SPINS.append((L, E, vaddr, P))
def publish(phase):
    A('s_mov_b64 exec, 1')
    A(f'buffer_store_dwordx2 {vr(vNON,2)}, off, {S_WS}, {sFLG} offset:{phase} sc1', tag='flag')
    A('s_mov_b64 exec, -1')
FILL = []; VF_ = []
def fill(n=1):
    for _ in range(n):
        if FILL: FILL.pop(0)()
def flush(): fill(len(FILL))
class Defer:
    def __call__(self, t): VF_.append(t)
D = Defer()
def vfill(n):
    for _ in range(n):
        if VF_: A(VF_.pop(0))
def vflush(): vfill(len(VF_))

if STAMPS: A(f's_mem{"real" if flag("--rt") else ""}time {sST0}'); A('s_memrealtime s[100:101]')
if opt('--deadline', 0): A('s_memrealtime s[2:3]' if False else 's_memrealtime s[98:99]')
A('s_load_dwordx16 s[4:19], s[0:1], 0'); A('s_load_dwordx4 s[20:23], s[0:1], 64'); A('s_load_dwordx2 s[24:25], s[0:1], 80')
A('s_cmp_ge_u32 s2, 256'); A('s_cbranch_scc1 L_end')
A('v_lshrrev_b32 v1, 6, v0'); A('v_and_b32 v0, 63, v0'); A(f'v_readfirstlane_b32 {sW}, v1')
A(f's_and_b32 {sT0}, s2, 7'); A(f's_lshr_b32 {sT1}, s2, 3')
vPF = 100
if not NOPF:
    b = srd(S_B)
    A(f's_getpc_b64 s[{b}:{b+1}]'); A('L_pc:'); A(f's_and_b32 s{b+1}, s{b+1}, 0xffff'); A(f's_mov_b32 s{b+2}, L_codeend-L_pc'); A(f's_mov_b32 s{b+3}, 0x20000')
    A(f's_and_b32 {sT2}, {sT1}, 7'); A(f's_lshl_b32 {sT2}, {sT2}, 3'); A(f's_add_u32 {sT2}, {sT2}, {sW}'); A(f's_lshl_b32 {sT2}, {sT2}, 9')
    A(f'v_lshlrev_b32 v{vPF}, 7, v0')
    A('s_mov_b64 exec, 15')
    A(f'buffer_load_dword v{vPF}, v{vPF}, {S_B}, {sT2} offen', tag='pf')
    A('s_mov_b64 exec, -1')
if MAPP1 == 0:
    A(f's_and_b32 {sRB}, {sT0}, 1'); A(f's_lshl_b32 {sRB}, {sRB}, 3'); A(f's_and_b32 {sT2}, {sT1}, 7'); A(f's_add_u32 {sRB}, {sRB}, {sT2}')
    A(f's_lshr_b32 {sJ}, {sT0}, 1'); A(f's_lshl_b32 {sJ}, {sJ}, 2'); A(f's_lshr_b32 {sT3}, {sT1}, 3'); A(f's_add_u32 {sJ}, {sJ}, {sT3}')
    if HALF: A(f's_add_u32 {sKB}, {sT3}, {sT2}')
    else: A(f's_lshl_b32 {sKB}, {sT3}, 1'); A(f's_add_u32 {sKB}, {sKB}, {sT2}')
else:
    A(f's_and_b32 {sRB}, {sT0}, 3'); A(f's_lshl_b32 {sRB}, {sRB}, 2'); A(f's_and_b32 {sT2}, {sT1}, 3'); A(f's_add_u32 {sRB}, {sRB}, {sT2}')
    A(f's_lshr_b32 {sJ}, {sT0}, 2'); A(f's_lshl_b32 {sJ}, {sJ}, 3'); A(f's_lshr_b32 {sT3}, {sT1}, 2'); A(f's_add_u32 {sJ}, {sJ}, {sT3}')
    if HALF: A(f's_add_u32 {sKB}, {sT3}, {sT2}')
    else: A(f's_lshl_b32 {sKB}, {sT2}, 1'); A(f's_add_u32 {sKB}, {sKB}, {sT3}')
A(f's_and_b32 {sKB}, {sKB}, {3 if HALF else 7}'); A(f's_lshl_b32 {sKB}, {sKB}, 7')
if STAMPS: A(f'v_mov_b32 v{vSTMP}, 0'); A('s_waitcnt lgkmcnt(0)'); A(f'v_writelane_b32 v{vSTMP}, s100, 62'); A('s_getreg_b32 s100, hwreg(HW_REG_XCC_ID)'); A(f'v_writelane_b32 v{vSTMP}, s100, 61'); A('s_getreg_b32 s100, hwreg(HW_REG_HW_ID)'); A(f'v_writelane_b32 v{vSTMP}, s100, 60')
A('v_lshrrev_b32 v72, 3, v0'); A('v_lshrrev_b32 v73, 4, v0'); A('v_and_b32 v74, 7, v0')
A('v_xor_b32 v75, v74, v73'); A('v_lshlrev_b32 v75, 4, v75'); A(f'v_lshl_add_u32 v{vXD0}, v72, 10, v75')
A(f's_lshl_b32 {sT2}, {sRB}, 17'); A(f's_lshl_b32 {sT3}, {sW}, 14'); A(f's_add_u32 {sT2}, {sT2}, {sT3}'); A(f'v_add_u32 v{vXD0}, {sT2}, v{vXD0}')
A(f'v_xor_b32 v{vXD1}, 64, v{vXD0}'); A(f'v_add_u32 v{vXD1}, {8192-1024}, v{vXD1}')
A('v_and_b32 v73, 1, v73'); A('v_lshlrev_b32 v73, 2, v73'); A('v_xor_b32 v75, v74, v73'); A('v_lshlrev_b32 v75, 4, v75')
A(f's_and_b32 {sT2}, {sJ}, 1'); A(f's_lshl_b32 {sT2}, {sT2}, 10'); A(f's_lshr_b32 {sT3}, {sJ}, 1'); A(f's_lshl_b32 {sT3}, {sT3}, 7')
A(f's_add_u32 {sT2}, {sT2}, {sT3}'); A(f's_mul_i32 {sT3}, {sW}, {8*3072}'); A(f's_add_u32 {sT2}, {sT2}, {sT3}'); A(f's_add_u32 {sT2}, {sT2}, 1024')
A(f'v_mul_u32_u24 v{vWD}, 3072, v72'); A(f'v_add3_u32 v{vWD}, v{vWD}, v75, {sT2}')
A(f's_lshl_b32 {sM11}, {sW}, 11'); A(f's_lshl_b32 {sM10}, {sW}, 10')
sROW = sSPIN; sRSO = 's3'
A(f'v_lshlrev_b32 v{vL16}, 4, v0')
A(f's_lshl_b32 {sROW}, {sRB}, 4'); A(f's_add_u32 {sROW}, {sROW}, {sJ}'); A(f's_lshl_b32 {sROW}, {sROW}, 13'); A(f's_add_u32 {sROW}, {sROW}, {sM10}')
A(f's_or_b32 {sT2}, s2, {sW}'); A(f's_cmp_eq_u32 {sT2}, 0')
A('s_waitcnt lgkmcnt(0)')
A('s_cbranch_scc1 L_nonce')
A('L_nonce_ret:')
stamp('karg')
mk_srd(S_X, 4, 2048 * 1024); mk_srd(S_WQ, 6, 512 * 3072)
def kb_next(s):
    A(f's_add_u32 {sKB}, {sKB}, 128'); A(f's_and_b32 {sKB}, {sKB}, {511 if HALF else 1023}')
    if HALF and 3 <= s <= 6: A(f's_or_b32 {sKB}, {sKB}, 512')
def q_c0(s):
    slot = s % 4
    def a():
        A(f's_add_u32 m0, {sM11}, {L_X + slot*16384}'); A(f's_mul_i32 {sD0}, {sKB}, 1536')
        dma(vXD0, S_X, sKB, 0, tag=f'c0s{s}')
    def b_(): dma(vXD1, S_X, sKB, 1024, tag=f'c0s{s}')
    def c():
        A(f's_add_u32 m0, {sM10}, {L_W0 + slot*8192}'); kb_next(s)
        dma(vWD, S_WQ, sD0, 0, tag=f'c0s{s}')
    FILL.extend([a, b_, c])
def q_c1(s):
    slot = s % 3
    def a():
        A(f's_add_u32 m0, {sM11}, {L_C1 + slot*16384}'); A(f's_mul_i32 {sD0}, {sKB}, {sC1M}')
        dma(vC1D0, S_C1, sD0, 0, tag=f'c1s{s}')
    def b_():
        dma(vC1D1, S_C1, sD0, 1024, tag=f'c1s{s}'); kb_next(s)
    FILL.extend([a, b_])
vXS = 124
A(f'buffer_load_dwordx4 {vr(vXS,4)}, v{vL16}, {S_X}, {sROW} offen', tag='xs')
q_c0(0); flush()
mk_srd(S_DBG, 22, 256)
vN0 = 122
A(f'buffer_load_dwordx2 {vr(vN0,2)}, off, {S_DBG}, 0 sc1', tag='non0')
stamp('dma0')
if MAPUV == 0:
    if flag('--oldu'): A(f's_lshl_b32 {sU}, {sT0}, 2')
    else: A(f's_and_b32 {sU}, {sT0}, 1'); A(f's_lshl_b32 {sU}, {sU}, 3'); A(f's_and_b32 {sT2}, {sT0}, 6'); A(f's_add_u32 {sU}, {sU}, {sT2}'); A(f's_lshl_b32 {sU}, {sU}, 1')
    A(f's_and_b32 {sT2}, {sT1}, 3'); A(f's_add_u32 {sU}, {sU}, {sT2}'); A(f's_lshr_b32 {sV}, {sT1}, 2')
    A(f's_lshl_b32 {sWOO}, {sT2}, 1'); A(f's_add_u32 {sWOO}, {sWOO}, {sV}')
else:
    A(f's_lshr_b32 {sU}, {sT0}, 1'); A(f's_lshl_b32 {sU}, {sU}, 3'); A(f's_and_b32 {sT2}, {sT1}, 7'); A(f's_add_u32 {sU}, {sU}, {sT2}')
    A(f's_and_b32 {sV}, {sT0}, 1'); A(f's_lshl_b32 {sV}, {sV}, 2'); A(f's_lshr_b32 {sT3}, {sT1}, 3'); A(f's_add_u32 {sV}, {sV}, {sT3}')
    A(f's_lshl_b32 {sWOO}, {sT3}, 1'); A(f's_add_u32 {sWOO}, {sWOO}, {sT2}')
if NOROT: A(f's_mov_b32 {sWOO}, 0')
A(f's_and_b32 {sRT}, {sW}, 3'); A(f's_lshr_b32 {sCT}, {sW}, 2'); A(f's_lshl_b32 {sSW}, {sCT}, 1'); A(f's_xor_b32 {sSW}, {sSW}, {sRT}')
A(f's_and_b32 {sCH}, {sW}, 1'); A(f's_lshr_b32 {sKQ}, {sW}, 1')
A(f's_lshl_b32 {sTMAX}, {sRB}, 2'); A(f's_add_u32 {sTMAX}, {sTMAX}, {sRT}')
mk_srd(S_WS, 24, WS_SIZE)
A(f'v_lshl_add_u32 v{vBDMA}, v72, 10, v75')
A('v_and_b32 v73, 31, v0'); A('v_lshrrev_b32 v74, 5, v0')
A('v_bfe_u32 v75, v0, 1, 3'); A('v_xor_b32 v75, v75, v74'); A('v_lshlrev_b32 v75, 4, v75')
A(f's_lshl_b32 {sT0}, {sRT}, 12'); A(f's_lshl_b32 {sT1}, {sSW}, 5')
A('v_lshl_add_u32 v75, v73, 7, v75'); A(f'v_add_u32 v75, {sT0}, v75'); A(f'v_xor_b32 v{vXA}, {sT1}, v75')
for p in range(1, 4): A(f'v_xor_b32 v{vXA+p}, {p << 5}, v{vXA}')
def tr_lane_parts(E, r4, c4, chf, out, tmp):
    E(f'v_bfe_u32 v{r4}, v0, 2, 2'); E(f'v_and_b32 v{c4}, 3, v0'); E(f'v_bfe_u32 v{chf}, v0, 4, 1')
    E(f'v_lshrrev_b32 v{out}, 1, v{c4}'); E(f'v_lshl_add_u32 v{out}, v{chf}, 1, v{out}')
    E(f'v_bfe_u32 v{tmp}, v0, 3, 1'); E(f'v_lshlrev_b32 v{tmp}, 2, v{tmp}'); E(f'v_xor_b32 v{out}, v{out}, v{tmp}')
    E(f'v_lshlrev_b32 v{out}, 4, v{out}'); E(f'v_and_b32 v{tmp}, 1, v{c4}'); E(f'v_lshl_add_u32 v{out}, v{tmp}, 3, v{out}')
u = 112
tr_lane_parts(A, u, u + 1, u + 2, u + 3, u + 4)
A(f'v_lshl_add_u32 v{u+5}, v74, 3, v{u}')
A(f's_lshl_b32 {sT0}, {sCT}, 6'); A(f's_lshl_b32 {sT1}, {sSW}, 11'); A(f's_add_u32 {sT1}, {sT1}, {L_W0}')
A(f'v_xor_b32 v80, {sT0}, v{u+3}'); A(f'v_lshl_add_u32 v80, v{u+5}, 7, v80'); A(f'v_add_u32 v{vWA}, {sT1}, v80')
for p in range(1, 4): A(f'v_xor_b32 v{vWA+p}, {p << 11}, v{vWA}')
def non_load(): A(f'buffer_load_dwordx2 {vr(vNON,2)}, off, {S_DBG}, 0 sc1', tag='non')
if S1POS == 0: q_c0(1); flush(); non_load(); stamp('dma1')
A('v_and_b32 v75, 3, v0'); A('v_lshrrev_b32 v76, 2, v0'); A('v_lshrrev_b32 v77, 4, v0'); A('v_xor_b32 v76, v76, v77'); A('v_and_b32 v76, 1, v76'); A('v_or_b32 v75, v75, v76')
A('v_cmp_eq_u32 vcc, 0, v75'); A(f'v_mov_b32 v{vF}, 0x3f803f80'); A('s_nop 0')
for r in range(4): A(f'v_cndmask_b32 v{vSEL+r}, 0, v{vF}, vcc')
NEG = f32(-1e30)
class Group:
    def __call__(self, t):
        if t.startswith('s_cselect'): VF_[-1] += chr(10) + t
        else: VF_.append(t)
G = Group()
def mk_srd_d(name, plo, size):
    b = srd(name)
    G(f's_mov_b32 s{b}, s{plo}'); G(f's_and_b32 s{b+1}, s{plo+1}, 0xffff'); G(f's_mov_b32 s{b+2}, {size}'); G(f's_mov_b32 s{b+3}, 0x20000')
mk_srd_d(S_W2, 16, 1376 * 1024); mk_srd_d(S_WO, 8, 512 * 1024); mk_srd_d(S_OUT, 20, 2048 * 1024); mk_srd_d(S_B, 14, 1376 * 2)
G('s_mov_b32 s26, s18'); G('s_mov_b32 s27, s19')
G(f's_mul_i32 {sT0}, {sJ}, 3'); G(f's_lshl_b32 {sT1}, {sJ}, 1'); G(f's_add_u32 {sT1}, {sT1}, 11'); G(f's_min_u32 {sTS}, {sT0}, {sT1}')
b = srd(S_C1)
G(f's_mov_b32 {sT0}, {512*2752}'); G(f's_movk_i32 {sT1}, 1376')
G(f's_cmp_ge_u32 {sW}, 6')
G(f's_cselect_b32 s{b}, s6, s12'); G(f's_cselect_b32 s{b+1}, s7, s13'); G(f's_cselect_b32 s{b+2}, {512*3072}, {sT0}')
G(f's_cselect_b32 {sC1M}, 1536, {sT1}'); G(f's_cselect_b32 {sT3}, {sJ}, {sTS}'); G(f's_cselect_b64 {sCMP}, -1, 0')
G(f's_and_b32 s{b+1}, s{b+1}, 0xffff'); G(f's_mov_b32 s{b+3}, 0x20000'); G(f's_lshl_b32 {sT3}, {sT3}, 6')
G(f's_lshl_b32 {sT0}, {sW}, 7')
w = u + 6
for d, add in ((vC1D0, 0), (vC1D1, 64)):
    G(f'v_add_u32 v{w}, {sT0}, v0')
    if add: G(f'v_add_u32 v{w}, {add}, v{w}')
    G(f'v_mul_u32_u24 v{w+1}, 5462, v{w}'); G(f'v_lshrrev_b32 v{w+1}, 16, v{w+1}')
    G(f'v_mul_u32_u24 v{w+2}, 12, v{w+1}'); G(f'v_sub_u32 v{w+2}, v{w}, v{w+2}'); G(f'v_lshlrev_b32 v{w+2}, 4, v{w+2}')
    G(f'v_mul_u32_u24 v{w+1}, 2752, v{w+1}'); G(f'v_add_u32 v{d}, v{w+1}, v{w+2}')
assert all(c // 12 == (c * 5462) >> 16 for c in range(768))
G(f's_lshl_b32 {sT0}, {sCH}, 5')
G(f'v_lshrrev_b32 v{w}, 2, v0'); G(f'v_add_u32 v{w}, {sT0}, v{w}'); G(f'v_mul_u32_u24 v{w}, 3072, v{w}')
G(f'v_and_b32 v{w+1}, 3, v0'); G(f'v_lshl_add_u32 v{w}, v{w+1}, 4, v{w}'); G(f'v_add_u32 v{w+1}, {16*3072}, v{w}')
G(f'v_cndmask_b32 v{vC1D0}, v{vC1D0}, v{w}, {sCMP}'); G(f'v_cndmask_b32 v{vC1D1}, v{vC1D1}, v{w+1}, {sCMP}')
G(f'v_add_u32 v{vC1D0}, {sT3}, v{vC1D0}'); G(f's_sub_u32 {sT3}, {sT3}, 1024'); G(f'v_add_u32 v{vC1D1}, {sT3}, v{vC1D1}')
NV_C1D = len(VF_)
G(f'v_lshlrev_b32 v{u+3}, 5, v{u+2}'); G(f'v_lshl_add_u32 v{u+3}, v{u+1}, 3, v{u+3}')
G(f'v_mul_u32_u24 v{u+4}, 192, v{u+5}'); G(f'v_add_u32 v{u+4}, v{u+4}, v{u+3}')
G(f's_mov_b32 {sT0}, {L_C1+128}')
G(f's_cmp_eq_u32 {sCT}, 0'); G(f's_cselect_b32 {sT2}, 64, 192'); G(f's_cselect_b32 {sT3}, {L_C1+12288}, {sT0}')
G(f'v_mul_u32_u24 v{u+5}, {sT2}, v{u+5}'); G(f'v_add_u32 v{u+5}, v{u+5}, v{u+3}')
G(f's_lshl_b32 {sT4}, {sCT}, 6'); G(f's_add_u32 {sT4}, {sT4}, {L_C1}'); G(f'v_add_u32 v{u+4}, {sT4}, v{u+4}'); G(f'v_add_u32 v{u+5}, {sT3}, v{u+5}'); G(f's_lshl_b32 {sT4}, {sT2}, 2')
for p in range(4):
    G(f's_xor_b32 {sT0}, {sSW}, {p}'); G(f's_mul_i32 {sT1}, {sT0}, 3072'); G(f'v_add_u32 v{vU0+p}, {sT1}, v{u+4}')
    G(f's_mul_i32 {sT1}, {sT0}, {sT2}'); G(f's_lshl_b32 {sT1}, {sT1}, 4')
    G(f'v_add_u32 v{vU1A+p}, {sT1}, v{u+5}'); G(f'v_add_u32 v{vU1B+p}, {sT4}, v{vU1A+p}')
for r in range(1, 4): G(f'v_mov_b32 v{vF+r}, v{vF}')
G(f'v_add_u32 v{u}, {L_ONES}, v{vL16}'); G(f'ds_write_b128 v{u}, {vr(vF,4)}')
G(f'v_and_b32 v{u}, 31, v0'); G(f'v_lshrrev_b32 v{u+1}, 5, v0'); G(f'v_lshlrev_b32 v{u+1}, 2, v{u+1}'); G(f'v_sub_u32 v{u}, v{u}, v{u+1}')
G(f's_lshl_b32 {sT0}, {sRT}, 3'); G(f'v_subrev_u32 v{u}, {sT0}, v{u}')
G(f's_cmp_eq_u32 {sCT}, 0'); G(f's_cselect_b32 {sT0}, 0, {NEG}'); G(f's_cselect_b32 {sT1}, {NEG}, 0')
G(f'v_mov_b32 v{u+1}, {sT0}'); G(f'v_mov_b32 v{u+2}, {sT1}')
for i in range(4): G(f'v_cmp_le_i32 vcc, {i}, v{u}\ns_nop 1\nv_cndmask_b32 v{vF+4+i}, v{u+2}, v{u+1}, vcc')
G(f's_add_u32 {sT0}, {sM10}, {L_BIAS}'); G(f'v_add_u32 v{u}, {sT0}, v{vL16}'); G(f'ds_write_b128 v{u}, {vr(vF+4,4)}')
G(f's_lshl_b32 {sT2}, {sCH}, 13'); G(f's_lshl_b32 {sT3}, {sV}, 7'); G(f's_add_u32 {sT2}, {sT2}, {sT3}'); G(f'v_add_u32 v{vBDMA}, {sT2}, v{vBDMA}')
G(f's_mul_i32 {sBS}, {sKQ}, 22'); G(f's_cmp_eq_u32 {sKQ}, 3'); G(f's_cselect_b32 {sBS}, 65, {sBS}')
G(f's_cmp_ge_u32 {sKQ}, 2'); G(f's_cselect_b32 {sT2}, 21, 22'); G(f's_add_u32 {sBE}, {sBS}, {sT2}')
if TWO:
    G(f's_mul_i32 {sBO}, {sWOO}, 3'); G(f's_lshr_b32 {sBO}, {sBO}, 1'); G(f's_cmp_ge_u32 {sBO}, 12'); G(f's_cselect_b32 {sT3}, 12, 0'); G(f's_sub_u32 {sBO}, {sBO}, {sT3}')
    G(f's_sub_u32 {sT2}, {sT2}, 12')
    G(f's_mul_i32 {sBO2}, {sWOO}, 5'); G(f's_lshr_b32 {sBO2}, {sBO2}, 2'); G(f's_cmp_ge_u32 {sBO2}, {sT2}'); G(f's_cselect_b32 {sT2}, {sT2}, 0'); G(f's_sub_u32 {sBO2}, {sBO2}, {sT2}')
    G(f's_add_u32 {sBM}, {sBS}, 12'); G(f's_add_u32 {sBO2}, {sBO2}, {sBM}')
else:
    G(f's_mul_i32 {sBO}, {sWOO}, 11'); G(f's_lshr_b32 {sBO}, {sBO}, 2'); G(f's_cmp_ge_u32 {sBO}, {sT2}'); G(f's_cselect_b32 {sT2}, {sT2}, 0'); G(f's_sub_u32 {sBO}, {sBO}, {sT2}')
G(f's_add_u32 {sBO}, {sBO}, {sBS}')
G(f's_lshl_b32 {sT2}, {sU}, 1'); G(f's_add_u32 {sT2}, {sT2}, {sCH}')
G(f's_mul_i32 {sT3}, {sT2}, 86'); G(f's_add_u32 {sT3}, {sT3}, {HF >> 10}')
for d, s_ in ((sHO, sBO), (sHS, sBS), (sHE, sBE)) + (((sHM, sBM), (sHO2, sBO2)) if TWO else ()): G(f's_add_u32 {d}, {s_}, {sT3}'); G(f's_lshl_b32 {d}, {d}, 10')
for r in (sBO, sBS, sBE) + ((sBM, sBO2) if TWO else ()): G(f's_lshl_b32 {r}, {r}, 14')
G(f's_and_b32 {sWOO}, {sWOO}, 7'); G(f's_lshl_b32 {sOO}, {sWOO}, 10'); G(f's_lshl_b32 {sWOO}, {sWOO}, 14')
G(f's_lshl_b32 {sOB}, {sT2}, 5'); G(f's_lshl_b32 {sT3}, {sKQ}, 3'); G(f's_add_u32 {sOB}, {sOB}, {sT3}'); G(f's_lshl_b32 {sOB}, {sOB}, 10'); G(f's_add_u32 {sOB}, {sOB}, {OF}')
G(f's_mul_i32 {sBL}, {sKQ}, {12*K1}'); G(f's_lshl_b32 {sT3}, {sCH}, 10'); G(f's_add_u32 {sBL}, {sBL}, {sT3}')
G(f's_lshl_b32 {sFLG}, {sRB}, 4'); G(f's_add_u32 {sFLG}, {sFLG}, {sJ}'); G(f's_lshl_b32 {sFLG}, {sFLG}, 8'); G(f's_lshl_b32 {sT3}, {sW}, 3'); G(f's_add_u32 {sFLG}, {sFLG}, {sT3}'); G(f's_add_u32 {sFLG}, {sFLG}, {FL}')
G(f's_lshl_b32 {sT2}, {sCT}, 21'); G(f's_lshl_b32 {sT0}, {sJ}, 17'); G(f's_add_u32 {sT2}, {sT2}, {sT0}'); G(f's_lshl_b32 {sT0}, {sRT}, 10'); G(f's_add_u32 {sT2}, {sT2}, {sT0}')
G(f's_mul_i32 {sKVL}, {sCT}, {24*K1}'); G(f's_add_u32 {sKVL}, {sKVL}, {sT0}')
for d, r in enumerate((sKV0, sKV1)):
    G(f's_sub_u32 {r}, {sRB}, {2-d}'); G(f's_cselect_b32 {r}, {sRB}, {r}'); G(f's_lshl_b32 {r}, {r}, 12'); G(f's_add_u32 {r}, {r}, {sT2}')
G(f's_lshl_b32 {sKV2}, {sRB}, 12'); G(f's_add_u32 {sKV2}, {sKV2}, {sT2}')
G(f's_mul_i32 {sT2}, {sTMAX}, 86'); G(f's_add_u32 {sT0}, {sTS}, {sCT}'); G(f's_lshl_b32 {sT0}, {sT0}, 1'); G(f's_add_u32 {sT0}, {sT0}, {sT2}')
G(f's_lshl_b32 {sT0}, {sT0}, 10'); G(f's_add_u32 {sHST}, {sT0}, {HF}')
G(f's_lshl_b32 {sT2}, {sTMAX}, 5'); G(f's_lshl_b32 {sT0}, {sJ}, 1'); G(f's_add_u32 {sT2}, {sT2}, {sT0}'); G(f's_add_u32 {sT2}, {sT2}, {sCT}')
G(f's_lshl_b32 {sT2}, {sT2}, 10'); G(f's_add_u32 {sOST}, {sT2}, {OF}')
G(f's_lshl_b32 {sOUT}, {sU}, 16'); G(f's_lshl_b32 {sT0}, {sW}, 13'); G(f's_add_u32 {sOUT}, {sOUT}, {sT0}'); G(f's_lshl_b32 {sT0}, {sV}, 7'); G(f's_add_u32 {sOUT}, {sOUT}, {sT0}')
G(f's_lshl_b32 {sA1}, {sKQ}, 13'); G(f's_lshl_b32 {sA0}, {sCH}, 12'); G(f's_add_u32 {sA0}, {sA0}, {sA1}')
def q_b1():
    def a():
        A(f'v_and_b32 v{vB1+1}, 31, v0'); A(f'v_lshlrev_b32 v{vB1+1}, 1, v{vB1+1}')
        A(f's_add_u32 {sSPIN}, {sTS}, {sCT}'); A(f's_lshl_b32 {sSPIN}, {sSPIN}, 6')
        A(f'buffer_load_ushort v{vB1}, v{vB1+1}, {S_B}, {sSPIN} offen', tag='b1')
        A(f's_add_u32 {sSPIN}, {sTS}, 2'); A(f's_lshl_b32 {sSPIN}, {sSPIN}, 6'); A(f's_cmp_eq_u32 {sCT}, 0'); A(f's_cselect_b32 {sSPIN}, 0x10000, {sSPIN}')
        A(f'buffer_load_ushort v{vB1+1}, v{vB1+1}, {S_B}, {sSPIN} offen', tag='b1')
    FILL.append(a)
NV_ALL0 = len(VF_)
PRE = opt('--pre', 125)
vfill(PRE)
if S1POS == 1: q_c0(1); flush(); non_load(); stamp('dma1')
A.wait(vm='xs')
vU = 96
for r in range(4): A(f'v_lshlrev_b32 v{vU+2*r}, 16, v{vXS+r}'); A(f'v_and_b32 v{vU+2*r+1}, 0xffff0000, v{vXS+r}')
def wave_sum(r, t):
    for mod in ('quad_perm:[1,0,3,2]', 'quad_perm:[2,3,0,1]', 'row_half_mirror', 'row_mirror'):
        A('s_nop 1'); A(f'v_add_f32_dpp v{r}, v{r}, v{r} {mod} row_mask:0xf bank_mask:0xf')
    for op in ('v_permlane16_swap_b32', 'v_permlane32_swap_b32'):
        A(f'v_mov_b32 v{t}, v{r}'); A('s_nop 1'); A(f'{op} v{r}, v{t}'); A(f'v_add_f32 v{r}, v{r}, v{t}')
A(f'v_add_f32 v{vXS}, v{vU}, v{vU+1}')
for r in range(2, 8): A(f'v_add_f32 v{vXS}, v{vXS}, v{vU+r}')
wave_sum(vXS, vXS + 2)
A(f'v_mul_f32 v{vXS}, {f32(1/512)}, v{vXS}')
for r in range(8): A(f'v_sub_f32 v{vU+r}, v{vU+r}, v{vXS}')
A(f'v_mul_f32 v{vXS+1}, v{vU}, v{vU}')
for r in range(1, 8): A(f'v_fmac_f32 v{vXS+1}, v{vU+r}, v{vU+r}')
wave_sum(vXS + 1, vXS + 2)
A(f'v_mul_f32 v{vXS+1}, {f32(1/512)}, v{vXS+1}')
A(f's_lshr_b32 {sRSO}, {sROW}, 6'); A(f's_add_u32 {sRSO}, {sRSO}, {RS}')
vfill(opt('--pre2', 0))
sEX0 = 's[22:23]'
A.wait(vm='non0')
A(f'v_readfirstlane_b32 {sD0}, v{vN0+1}'); A(f'v_mov_b32 v{vXS+2}, v{vN0}'); A(f'v_mov_b32 v{vXS+3}, v{vN0+1}')
A(f's_cmp_lg_u32 {sD0}, 0'); A(f's_cselect_b64 exec, 1, 0'); A(f's_cselect_b64 {sEX0}, 0, 1')
A(f'buffer_store_dwordx4 {vr(vXS,4)}, off, {S_WS}, {sRSO} sc1', tag='rsst0')
A('s_mov_b64 exec, -1')
q_c0(2); flush()
def publish_stats():
    A.wait(vm='non')
    A(f'v_readfirstlane_b32 {sNH}, v{vNON+1}'); A(f'v_readfirstlane_b32 {sNL}, v{vNON}')
    A(f's_cmp_eq_u32 {sNH}, 0'); A('s_cbranch_scc1 L_nonspin')
    A('L_nonspin_ret:')
    A(f'v_mov_b32 v{vXS+2}, v{vNON}'); A(f'v_mov_b32 v{vXS+3}, v{vNON+1}')
    A(f's_mov_b64 exec, {sEX0}')
    A(f'buffer_store_dwordx4 {vr(vXS,4)}, off, {S_WS}, {sRSO} sc1', tag='rsst')
    A('s_mov_b64 exec, -1')
stamp('setup')
q_c0(3)
A.wait(lg=0)

def advance(p, cur, inc, S, M, E, O2):
    if p == 0: A('s_nop 0')
    elif TWO and p == 12: A(f's_mov_b32 {cur}, {O2}')
    else:
        lo, hi = ((S, M) if p < 12 else (M, E)) if TWO else (S, E)
        A(f's_add_u32 {cur}, {cur}, {inc}'); A(f's_cmp_eq_u32 {cur}, {hi}'); A(f's_cselect_b32 {cur}, {lo}, {cur}')
def q_b(p0, region, tag, n=6, base=None):
    for p in range(p0, p0 + n):
        def one(p=p):
            A(f's_add_u32 m0, {base or sBL}, {region + (p-p0)*2048}')
            if p < 22:
                advance(p, sBO, 16384, sBS, sBM, sBE, sBO2)
                dma(vBDMA, S_W2, sBO, 0, tag=tag)
            else:
                if p > 22: A(f's_add_u32 {sWOO}, {sWOO}, 16384'); A(f's_and_b32 {sWOO}, {sWOO}, 0x1ffff')
                A(f's_lshl_b32 {sD0}, {sKQ}, 17'); A(f's_or_b32 {sD0}, {sD0}, {sWOO}')
                dma(vBDMA, S_WO, sD0, 0, tag=tag)
        FILL.append(one)
def bf_reg(p): return vBF + 4 * p if p < 24 else vBD + 4 * (p - 24)
RF = []
def rfill(n):
    for _ in range(n):
        if RF: RF.pop(0)()
def b_reads(p0, region, tag, n=6, adj=None, queue=False, areg=None):
    a, o2 = (vLB4, 1024) if p0 < 22 else (vLB5, 512)
    r = t0 if areg is None else areg
    A(f'v_add_u32 v{r}, {region}, v{a}')
    if adj: A(f'v_subrev_u32 v{r}, {adj}, v{r}')
    for p in range(p0, p0 + n):
        for h in range(2):
            RF.append(lambda p=p, h=h: A(f'ds_read_b64_tr_b16 {vr(bf_reg(p)+2*h,2)}, v{r} offset:{(p-p0)*2048+h*o2}', tag=tag))
    if not queue: rfill(len(RF))

def kloop(pref, reads, mfmas, hook, prelast, last_reads, prebarrier=lambda s: None, nfill=lambda n: 1, nv=0):
    A.wait(vm=f'{pref}s0'); stamp(f'{pref}b0'); A('s_barrier')
    reads(0); reads(1)
    for n in range(31):
        if (n + 2) % 4 == 0:
            s = (n + 2) // 4
            if s == 8: prelast()
            A.wait(lg=0); mfmas(n)
            if s < 8: A.wait(vm=f'{pref}s{s}')
            prebarrier(s)
            if not FEWST or s in (1, 7): stamp(f'{pref}b{s}')
            A('s_barrier')
            if s < 8: reads(n + 2)
            else: last_reads(); mfmas(31); hook(8)
        else:
            if n % 4 != 3: A.wait(lg=f'{pref}r{n}')
            mfmas(n); reads(n + 2)
            if n % 4 == 3: hook((n + 1) // 4)
            k = nfill(n); had = len(FILL); fill(k)
            vfill(nv if had else 2 * nv)

vSQb, vSQc = vCS1, vF
def c0_reads(n):
    s, p = divmod(n, 4); slot = s % 4; wb = vWB + 4 * (n % 6); t = f'c0r{n}'
    A(f'ds_read_b128 {vr(vXF+4*n,4)}, v{vXA+p} offset:{L_X + slot*16384}', tag=t)
    A(f'ds_read_b64_tr_b16 {vr(wb,2)}, v{vWA+p} offset:{slot*8192}', tag=t)
    A(f'ds_read_b64_tr_b16 {vr(wb+2,2)}, v{vWA+p} offset:{slot*8192+512}', tag=t)
def c0_mfmas(n):
    p = n % 4; wb = vWB + 4 * (n % 6); x = vXF + 4 * n
    if p == 0: A(f'v_mfma_f32_16x16x32_bf16 {vr(vCS0,4)}, {vr(vSEL,4)}, {vr(wb,4)}, {0 if n == 0 else vr(vCS0,4)}')
    A(f'v_mfma_f32_32x32x16_bf16 {vr(vAC0,16)}, {vr(wb,4)}, {vr(x,4)}, {0 if n == 0 else vr(vAC0,16)}')
def kloop4(pref, reads, mfmas, hook, prelast, last_reads):
    A.wait(vm=f'{pref}s0'); stamp(f'{pref}b0'); A('s_barrier')
    for n in range(4): reads(n)
    for n in range(30):
        A.wait(lg=f'{pref}r{n}'); mfmas(n)
        if n % 4 == 0 and n < 28:
            s = n // 4 + 1
            A.wait(vm=f'{pref}s{s}')
            if not FEWST or s in (1, 7): stamp(f'{pref}b{s}')
            A('s_barrier'); reads(n + 4); hook(s)
        else:
            if n + 4 < 32: reads(n + 4)
            if n == 28: hook(8)
            fill(-(-len(FILL) // (4 - n % 4)) if n % 4 else 1); vfill(opt('--nv0', 5) if n < 24 else 8)
    A.wait(lg=0); mfmas(30); prelast(); mfmas(31); A.wait(lg=0); stamp(f'{pref}b8'); A('s_barrier'); last_reads()
EPS = f32(1e-5)
GC0 = -2.0 * 1.4426950408889634 * 0.7978845608028654
m, var = vRS, vRS + 1
GR_AT, TOK_AT = opt('--gr', 5), opt('--tok', 7)
def token_side():
    L = A.label('gs'); SPINS4.append(L)
    A.wait(vm='gr')
    A(f'v_cmp_ne_u64 vcc, {sNON}, {vr(vRS+2,2)}'); A(f's_cbranch_vccnz {L}'); A(f'{L}r:')
    D(f'v_add_f32 v{vSQ}, {EPS}, v{var}'); D(f'v_sub_f32 v{m}, 0, v{m}')
    D(f'v_rsq_f32 v{vR1}, v{vSQ}'); D(f'v_cvt_pk_bf16_f32 v{vT}, v{m}, v{m}')
    D(f'v_mul_f32 v{vSQ}, v{var}, v{vR1}'); D(f'v_mov_b32 v{vSQ+1}, {EPS}'); D(f'v_and_b32 v{vT}, 0xffff0000, v{vT}')
    D(f'v_fma_f32 v{vSQ}, v{vSQ}, v{vR1}, v{vSQ+1}'); D(f'v_sub_f32 v{vT}, v{m}, v{vT}'); D(f'v_rsq_f32 v{vSQ}, v{vSQ}')
    D(f'v_cvt_pk_bf16_f32 v{vT}, v{m}, v{vT}'); D(f'v_mul_f32 v{vSQ}, v{vSQ}, v{vR1}'); D(f'v_rcp_f32 v{vIRR}, v{vSQ}')
    D(f'v_mul_f32 v{vK0}, {f32(GC0)}, v{vSQ}'); D(f'v_mul_f32 v{vK1}, v{vSQ}, v{vSQ}'); D(f'v_mul_f32 v{vK1}, v{vK1}, v{vK0}'); D(f'v_mul_f32 v{vK1}, {f32(0.044715)}, v{vK1}')
    D(f'v_cvt_pk_bf16_f32 v{vT+1}, v{m}, v{vIRR}'); D(f'v_and_b32 v{vT+2}, 0xffff0000, v{vT+1}'); D(f'v_sub_f32 v{vT+2}, v{vIRR}, v{vT+2}'); D(f'v_cvt_pk_bf16_f32 v{vT+2}, v{vT+2}, 0')
    D(f'v_mov_b32 v{vT+3}, 0')
    D('s_mov_b32 exec_lo, 0\n' + '\n'.join(f'v_mov_b32 v{vT+r}, 0' for r in range(3)) + '\ns_mov_b32 exec_lo, -1')
    D(f'v_and_b32 v{t0}, 31, v0'); D(f'v_lshrrev_b32 v{t1}, 5, v0'); D(f'v_lshlrev_b32 v{t0}, 5, v{t0}'); D(f'v_lshl_add_u32 v{t0}, v{t1}, 4, v{t0}')
    D(f's_bitcmp1_b32 {sJ}, 0\ns_cselect_b64 {sCMP}, -1, 0\ns_cselect_b32 {sT0}, {VF}, {KF}')
    D(f's_lshr_b32 {sT1}, {sJ}, 1'); D(f's_lshl_b32 {sT1}, {sT1}, 1'); D(f's_add_u32 {sT1}, {sT1}, {sCT}'); D(f's_lshl_b32 {sT1}, {sT1}, 17')
    D(f'v_cndmask_b32 v{t0}, v{vL16}, v{t0}, {sCMP}')
    D(f's_add_u32 {sT0}, {sT0}, {sT1}'); D(f's_lshl_b32 {sT1}, {sTMAX}, 10'); D(f's_add_u32 {sT0}, {sT0}, {sT1}'); D(f's_add_u32 {sT1}, {sT0}, 65536')
SPINS4 = []
vGA = vSQ + 2
def c0_hook(s):
    assert s == 1 or not FILL
    if 2 <= s <= 5: q_c0(s + 2)
    elif s in (6, 7): q_c1(s - 6)
    if s == 1:
        def a():
            A(f'v_and_b32 v{t0}, 31, v0')
            A(f's_lshl_b32 {sSPIN}, {sCT}, 9'); A(f's_lshl_b32 {sA2}, {sRT}, 2'); A(f's_add_u32 {sSPIN}, {sSPIN}, {sA2}'); A(f's_add_u32 {sSPIN}, {sSPIN}, {L_SCOL0}')
            A(f'v_lshl_add_u32 v{t2}, v{t0}, 4, {sSPIN}'); A(f'v_subrev_u32 v{vGA+1}, {sA2}, v{t2}')
            A(f's_lshl_b32 {sSPIN}, {sTMAX}, 9'); A(f's_add_u32 {sSPIN}, {sSPIN}, {RS}'); A(f'v_lshl_add_u32 v{vGA}, v{t0}, 4, {sSPIN}')
        FILL.append(a)
    if s == opt('--pubs', 1): FILL.append(publish_stats)
    if s == 6: assert NV_ALL0 - len(VF_) >= NV_C1D, (NV_ALL0, len(VF_)); q_b1()
    if s == GR_AT: A(f'buffer_load_dwordx4 {vr(vRS,4)}, v{vGA}, {S_WS}, 0 offen sc1', tag='gr')
    if s == TOK_AT: vflush(); token_side()
def c0_prelast():
    flush(); vflush()
    A(f'ds_write_b32 v{t2}, v{vCS0}', tag='st')
def c0_lastreads():
    A(f'ds_read_b128 {vr(vCS1,4)}, v{vGA+1}', tag='str')
PHASE[0] = 'c0'
kloop4('c0', c0_reads, c0_mfmas, c0_hook, c0_prelast, c0_lastreads)

PHASE[0] = 'e0'
def feat_frag(F, C, b1):
    A(f'v_add_f32 v{C}, v{C}, v{C+1}'); A(f'v_add_f32 v{C+2}, v{C+2}, v{C+3}'); A(f'v_add_f32 v{C}, v{C}, v{C+2}')
    A(f'v_cvt_pk_bf16_f32 v{F}, v{C}, v{C}'); A(f'v_and_b32 v{C+1}, 0xffff0000, v{F}'); A(f'v_sub_f32 v{C+1}, v{C}, v{C+1}')
    A(f'v_cvt_pk_bf16_f32 v{F+1}, v{C+1}, 0')
    if b1 is None: A(f'v_mov_b32 v{F+2}, 0')
    else: A(f'v_lshl_or_b32 v{F+1}, v{b1}, 16, v{F+1}'); A(f'v_mov_b32 v{F+2}, v{b1}')
    A(f'v_mov_b32 v{F+3}, 0')

A.wait(lg='str')
feat_frag(vF, vCS1, None)
A('s_nop 1')
A(f'v_mfma_f32_32x32x16_bf16 {vr(vAC0,16)}, {vr(vF,4)}, {vr(vT,4)}, {vr(vAC0,16)}')
A('s_nop 11')
scale(vAC0, 8, vR1)
for r in range(4): A(f'v_cvt_pk_bf16_f32 v{vAC0+r}, v{vAC0+2*r}, v{vAC0+2*r+1}')
A(f'buffer_store_dwordx4 {vr(vAC0,4)}, v{t0}, {S_WS}, {sT0} offen sc1', tag='kvst')
scale(vAC0 + 8, 8, vR1)
for r in range(4, 8): A(f'v_cvt_pk_bf16_f32 v{vAC0+r}, v{vAC0+2*r}, v{vAC0+2*r+1}')
A(f'buffer_store_dwordx4 {vr(vAC0+4,4)}, v{t0}, {S_WS}, {sT1} offen sc1', tag='kvst')
stamp('c0end')

a0, a1, a2, a3, a4 = 66, 67, 68, 69, 70
tr_lane_parts(D, a0, a1, a2, a3, a4)
D(f'v_lshrrev_b32 v{a4}, 5, v0')
D(f's_lshl_b32 {sT1}, {sCH}, 6'); D(f'v_xor_b32 v{a3}, {sT1}, v{a3}'); D(f's_mul_i32 {sT1}, {sKQ}, {12*K1}'); D(f'v_add_u32 v{a3}, {sT1}, v{a3}')
D(f'v_lshl_add_u32 v{vLB4}, v{a4}, 2, v{a0}'); D(f'v_lshl_add_u32 v{vLB4}, v{vLB4}, 7, v{a3}'); D(f'v_lshl_add_u32 v{vLB5}, v{a4}, 9, v{vLB4}')
D(f's_sub_u32 {sT0}, {sRB}, 2\ns_cselect_b32 {sT0}, {sRB}, {sT0}'); D(f's_sub_u32 {sT1}, {sRB}, 1\ns_cselect_b32 {sT1}, {sRB}, {sT1}')
D(f'v_mov_b32 v{vPKA}, {sRB}'); D(f'v_writelane_b32 v{vPKA}, {sT0}, 0'); D(f'v_writelane_b32 v{vPKA}, {sT1}, 1')
D(f's_and_b32 {sT0}, {sJ}, 14'); D(f's_add_u32 {sT0}, {sT0}, {sCT}'); D(f's_lshl_b32 {sT0}, {sT0}, 8')
D(f's_and_b32 {sT1}, {sJ}, 1'); D(f's_lshl_b32 {sT1}, {sT1}, 2'); D(f's_add_u32 {sT1}, {sT1}, {sRT}'); D(f's_lshl_b32 {sT1}, {sT1}, 3')
D(f's_add_u32 {sT0}, {sT0}, {sT1}'); D(f's_add_u32 {sT0}, {sT0}, {FL+FK}')
D(f'v_lshlrev_b32 v{vPKA}, 12, v{vPKA}'); D(f'v_add_u32 v{vPKA}, {sT0}, v{vPKA}')
D(f'v_add_u32 v{vL16B}, 0x10000, v{vL16}')
NV_KV = len(VF_)
D(f's_mul_i32 {sT0}, {sCT}, {12*K1}'); D(f's_lshl_b32 {sT1}, {sRT}, 10'); D(f's_add_u32 {sT0}, {sT0}, {sT1}')
D(f'v_add_u32 v{vKA}, {sT0}, v{vL16}')
D(f'v_lshlrev_b32 v{a3}, 7, v{a4}'); D(f'v_lshl_add_u32 v{a3}, v{a0}, 5, v{a3}'); D(f'v_lshl_add_u32 v{a3}, v{a1}, 3, v{a3}')
D(f's_add_u32 {sT0}, {sT0}, {24*K1+8*K1}'); D(f'v_add_u32 v{a3}, {sT0}, v{a3}')
D(f'v_and_b32 v{a0}, 15, v0'); D(f'v_lshlrev_b32 v{a0}, 3, v{a0}'); D(f'v_xor_b32 v{a4}, 1, v{a4}'); D(f'v_lshl_add_u32 v{a0}, v{a4}, 7, v{a0}'); D(f'v_add_u32 v{a0}, {L_ONES}, v{a0}')
D(f'v_cmp_eq_u32 {sCMP}, 0, v{a2}'); D(f'v_mov_b32 v{a4}, {-1024 & 0xffffffff}'); D('s_nop 0')
D(f'v_cndmask_b32 v{vVA}, v{a0}, v{a3}, {sCMP}'); D(f'v_cndmask_b32 v{vVST}, 0, v{a4}, {sCMP}')
D(f's_lshl_b32 {sT0}, {sU}, 1'); D(f's_add_u32 {sT0}, {sT0}, {sCH}')
D(f's_lshr_b32 {sT1}, {sT0}, 2'); D(f's_lshl_b32 {sT1}, {sT1}, 12'); D(f's_and_b32 {sT0}, {sT0}, 3'); D(f's_lshl_b32 {sT0}, {sT0}, 3'); D(f's_add_u32 {sT1}, {sT1}, {sT0}')
D(f's_add_u32 {sT1}, {sT1}, {FL+FH}')
D(f'v_and_b32 v{a1}, 1, v0'); D(f'v_lshlrev_b32 v{a1}, 5, v{a1}'); D(f'v_add_u32 v{a1}, {sT1}, v{a1}')
D(f'v_bfe_u32 v{a0}, v0, 1, 4'); D(f'v_lshl_add_u32 v{vPHA}, v{a0}, 8, v{a1}')
D(f's_lshl_b32 {sT0}, {sKQ}, 10'); D(f's_add_u32 {sT0}, {sT0}, {FO-FH}')
D(f'v_and_b32 v{a0}, 3, v{a0}'); D(f'v_lshl_add_u32 v{vPOA}, v{a0}, 8, v{a1}'); D(f'v_add_u32 v{vPOA}, {sT0}, v{vPOA}')
D(f'v_lshrrev_b32 v{a0}, 4, v0'); D(f'v_bfe_u32 v{a1}, v0, 3, 1'); D(f'v_lshl_add_u32 v{a2}, v{a1}, 2, v{a0}')
D(f'v_and_b32 v{a3}, 7, v0'); D(f'v_lshlrev_b32 v{a3}, 4, v{a3}'); D(f'v_lshl_add_u32 v{vROW}, v{a2}, 10, v{a3}')
D(f's_lshl_b32 {sT0}, {sW}, 2'); D(f'v_add_u32 v{a0}, {sT0}, v{a0}'); D(f'v_mul_u32_u24 v{a0}, {REDP}, v{a0}'); D(f'v_lshl_add_u32 v{a0}, v{a1}, 7, v{a0}')
D(f'v_and_b32 v{a1}, 3, v0'); D(f'v_lshl_add_u32 v{a0}, v{a1}, 5, v{a0}')
D(f'v_bfe_u32 v{a1}, v0, 2, 1'); D(f'v_mul_u32_u24 v{a1}, {32*REDP}, v{a1}'); D(f'v_add_u32 v{vRED}, v{a0}, v{a1}')
D(f'v_and_b32 v{t0}, 31, v0')
D(f's_lshl_b32 {sT0}, {sCT}, 10'); D(f's_lshl_b32 {sT1}, {sRT}, 2'); D(f's_add_u32 {sT0}, {sT0}, {sT1}'); D(f's_add_u32 {sT0}, {sT0}, {L_SCOL1}')
D(f'v_lshl_add_u32 v{t2}, v{t0}, 4, {sT0}'); D(f'v_subrev_u32 v{t1}, {sT1}, v{t2}')
for r in range(16): D(f'v_mov_b32 v{vCB+r}, 0')
NV_ALL = len(VF_)

def c1_reads(n):
    s, p = divmod(n, 4); slot = s % 3; wb = vWB + 8 * (n % 3); t = f'c1r{n}'; o = slot * 16384
    A(f'ds_read_b64_tr_b16 {vr(wb,2)}, v{vU0+p} offset:{o}', tag=t)
    A(f'ds_read_b64_tr_b16 {vr(wb+2,2)}, v{vU0+p} offset:{o+768}', tag=t)
    A(f'ds_read_b64_tr_b16 {vr(wb+4,2)}, v{vU1A+p} offset:{o}', tag=t)
    A(f'ds_read_b64_tr_b16 {vr(wb+6,2)}, v{vU1B+p} offset:{o}', tag=t)
def c1_mfmas(n):
    if flag('--kpf'): A('s_setprio 1')
    c1_mfmas_(n)
    if flag('--kpf'): A('s_setprio 0')
def c1_mfmas_(n):
    p = n % 4; wb = vWB + 8 * (n % 3); x = vXF + 4 * n; z = n == 0
    if p == 0:
        A(f'v_mfma_f32_16x16x32_bf16 {vr(vCS0,4)}, {vr(vSEL,4)}, {vr(wb,4)}, {0 if z else vr(vCS0,4)}')
        A(f'v_mfma_f32_16x16x32_bf16 {vr(vCS1,4)}, {vr(vSEL,4)}, {vr(wb+4,4)}, {0 if z else vr(vCS1,4)}')
    A(f'v_mfma_f32_32x32x16_bf16 {vr(vAC0,16)}, {vr(wb,4)}, {vr(x,4)}, {0 if z else vr(vAC0,16)}')
    A(f'v_mfma_f32_32x32x16_bf16 {vr(vAC1,16)}, {vr(wb+4,4)}, {vr(x,4)}, {0 if z else vr(vAC1,16)}')
BASCH = sys.argv[sys.argv.index('--basch') + 1] if flag('--basch') else '2111100'
assert sum(map(int, BASCH)) == 6
KVSCH = sys.argv[sys.argv.index('--kvsch') + 1] if flag('--kvsch') else ''
if KVSCH: KV_AT = min(i for i, c in enumerate(KVSCH) if c != '0') + 1; assert sum(map(int, KVSCH)) == 6
SPREAD = not flag('--lump'); BAQ = []; KVQ = []; KVN = opt('--kvn', 3)
q_c1(2)
def c1_hook(s):
    if s == PUBK: A.wait(vm='kvst'); publish(FK)
    if s + 2 <= 7:
        old = list(FILL); FILL.clear(); q_c1(s + 2); FILL.extend(old)
    if SPREAD:
        if s == 1:
            keep = list(FILL); FILL.clear(); q_b(0, L_RA, 'bA'); BAQ.extend(FILL); FILL[:] = keep
        for _ in range(int(BASCH[s - 1]) if s < 8 else 0): FILL.append(BAQ.pop(0))
    elif s == BA_AT: q_b(0, L_RA, 'bA')
    if s == KV_AT - opt('--kvlead', 2):
        assert NV_ALL - len(VF_) >= NV_KV
        FILL.append(lambda: poll_issue(vPKA, vPK, 'kvpoll'))
    if s == KV_AT:
        poll_finish(vPKA, vPK, 'kvpoll')
        for d, r in (((2, sKV2), (1, sKV1), (0, sKV0)) if KVSCH else enumerate((sKV0, sKV1, sKV2))):
            for e in range(2):
                def a(d=d, r=r, e=e):
                    A(f's_add_u32 m0, {sKVL}, {d*4096+e*12*K1}'); A('s_nop 0')
                    dma(vL16B if e else vL16, S_WS, r, 0, tag='kv', sc1=True)
                KVQ.append(a)
    if KVSCH and s < 8:
        for _ in range(int(KVSCH[s - 1])): FILL.append(KVQ.pop(0))
    elif KVQ and s < 8:
        for _ in range(min(KVN, len(KVQ)) if s < 7 else len(KVQ)): FILL.append(KVQ.pop(0))
    if s == 8:
        b_reads(0, L_RA, 'bra', queue=True, areg=34); q_b(6, L_RB, 'bB')
def c1_prebar(s):
    if s == 8: flush(); A.wait(vm='bA')
def c1_prelast():
    vflush()
    A(f'ds_write_b32 v{t2}, v{vCS0}', tag='st'); A(f'ds_write_b32 v{t2}, v{vCS1} offset:512', tag='st')
def c1_lastreads():
    A(f'ds_read_b128 {vr(vCS0,4)}, v{t1}', tag='str1'); A(f'ds_read_b128 {vr(vCS1,4)}, v{t1} offset:512', tag='str1')
PHASE[0] = 'c1'
kloop('c1', c1_reads, c1_mfmas, c1_hook, c1_prelast, c1_lastreads, c1_prebar, nfill=lambda n: -(-len(FILL) // {3: 3, 0: 2, 1: 1}[n % 4]), nv=opt('--nv', 5))

PHASE[0] = 'gelu'
PMB = flag('--pmb')
fill(2 if PMB else 1)
A.wait(lg='str1', vm='b1')
feat_frag(vF + 4, vCS1, vB1 + 1); feat_frag(vF, vCS0, vB1)
A(f'v_mfma_f32_32x32x16_bf16 {vr(vAC1,16)}, {vr(vF+4,4)}, {vr(vT,4)}, {vr(vAC1,16)}')
A(f'v_add_u32 v{vBIA}, {L_BIAS}, v{vL16}')
A(f'v_mfma_f32_32x32x16_bf16 {vr(vAC0,16)}, {vr(vF,4)}, {vr(vT,4)}, {vr(vAC0,16)}')
fill(2 if PMB else 1); rfill(4)
A(f'v_add_u32 v{vAS[0]}, {sA1}, v{vL16}'); A(f'v_add_u32 v{vAS[1]}, 0x10000, v{vAS[0]}')
A(f's_lshl_b32 {sT0}, {sRT}, 10'); A(f's_add_u32 {sT0}, {sT0}, {L_QX}'); A(f'v_add_u32 v{t2}, {sT0}, v{vL16}')
vGT = 128
def gelu_store(acc, off, slot=lambda g, k: None, pk=True):
    tmp = vGT
    (pK1, h1), (pK0, h0), (pI, hi) = bc(vK1), bc(vK0), bc(vIRR)
    for g in range(2):
        a = acc + 8 * g
        if PK and pk:
            for r in range(0, 8, 2): A(f'v_pk_mul_f32 {vr(tmp+r,2)}, {vr(a+r,2)}, {vr(a+r,2)}')
            for r in range(0, 8, 2): A(f'v_pk_fma_f32 {vr(tmp+r,2)}, {vr(tmp+r,2)}, {pK1}, {pK0} op_sel:[0,{h1},{h0}] op_sel_hi:[1,{h1},{h0}]')
            for r in range(0, 8, 2): A(f'v_pk_mul_f32 {vr(tmp+r,2)}, {vr(tmp+r,2)}, {vr(a+r,2)}')
        else:
            for r in range(8): A(f'v_mul_f32 v{tmp+r}, v{a+r}, v{a+r}')
            for r in range(8): A(f'v_fma_f32 v{tmp+r}, v{tmp+r}, v{vK1}, v{vK0}')
            for r in range(8): A(f'v_mul_f32 v{tmp+r}, v{tmp+r}, v{a+r}')
        slot(g, 0)
        for r in range(8): A(f'v_exp_f32 v{tmp+r}, v{tmp+r}')
        if PK and pk:
            for r in range(0, 8, 2): A(f'v_pk_fma_f32 {vr(tmp+r,2)}, {vr(tmp+r,2)}, {pI}, {pI} op_sel:[0,{hi},{hi}] op_sel_hi:[1,{hi},{hi}]')
        else:
            for r in range(8): A(f'v_fma_f32 v{tmp+r}, v{tmp+r}, v{vIRR}, v{vIRR}')
        slot(g, 1)
        for r in range(8): A(f'v_rcp_f32 v{tmp+r}, v{tmp+r}')
        if PK and pk:
            for r in range(0, 8, 2): A(f'v_pk_mul_f32 {vr(a+r,2)}, {vr(tmp+r,2)}, {vr(a+r,2)}')
        else:
            for r in range(8): A(f'v_mul_f32 v{a+r}, v{tmp+r}, v{a+r}')
        for r in range(4): A(f'v_cvt_pk_bf16_f32 v{a+r}, v{a+2*r}, v{a+2*r+1}')
        A(f'buffer_store_dwordx4 {vr(a,4)}, v{vL16}, {S_WS}, {sHST} offen offset:{off+1024*g} sc1', tag='hst')
PRIO = opt('--prio', 1)
Lqe = A.label('qe')
A(f's_cmp_lg_u32 {sCT}, 0'); A(f's_cbranch_scc1 {Lqe}')
A.opt_begin()
A(f'v_mul_f32 v{vR1}, {f32(0.25*1.4426950408889634)}, v{vR1}')
scale(vAC1, 16, vR1)
for r in range(4): A(f'v_cvt_pk_bf16_f32 v{vQ+r}, v{vAC1+2*r}, v{vAC1+2*r+1}')
for r in range(4): A(f'v_cvt_pk_bf16_f32 v{vAC1+r}, v{vAC1+8+2*r}, v{vAC1+8+2*r+1}')
A(f'ds_write_b128 v{t2}, {vr(vAC1,4)}', tag='qx')
A.opt_end()
A(f'{Lqe}:')
A('s_nop 1')
gelu_store(vAC0, 0, lambda g, k: (fill(), rfill(2)))
assert not FILL and not RF

A.wait(vm='bB' if PMB else 'kv', lg=0); stamp('pm'); A('s_barrier')
def Sb(t): return vS0 + 16 * (t & 1)
def k_read(t): A(f'ds_read_b128 {vr(vKB+4*(t&1),4)}, v{vKA} offset:{(8-t)*1024}', tag=f'kv{t-1}')
def v_read(t):
    vb = vVB + 8 * (t & 1)
    for q in range(4): A(f'ds_read_b64_tr_b16 {vr(vb+2*q,2)}, v{vVA} offset:{q*256}', tag=f'kv{t}')
def bias_read(tab, dst, tag):
    for g in range(4): A(f'ds_read_b128 {vr(dst+4*g,4)}, v{vBIA} offset:{(tab*4+g)*1024}', tag=tag)
k_read(0); bias_read(0, Sb(0), 'kv-1'); k_read(1); v_read(0)
Lg2 = A.label('g2')
A(f's_cmp_eq_u32 {sCT}, 0'); A(f's_cbranch_scc1 {Lg2}')
A.opt_begin()
A(f'ds_read_b128 {vr(vQ,4)}, v{t2}', tag='qr')
A.opt_end()
A(f's_cmp_ge_u32 {sJ}, 11'); A(f's_cbranch_scc1 {Lg2}')
A.opt_begin()
if PRIO: A('s_setprio 1')
gelu_store(vAC1, 2048, pk=not flag('--nopk2'))
if PRIO: A('s_setprio 0')
A.opt_end()
A(f'{Lg2}:')
stamp('gelu')
A.wait(lg=0)
A(f'v_mfma_f32_32x32x16_bf16 {vr(Sb(0),16)}, {vr(vKB,4)}, {vr(vQ,4)}, {vr(Sb(0),16)}')
if PMB: b_reads(6, L_RB, 'brb', queue=True, areg=34); rfill(6)
q_b(12, L_RA, 'bC1'); fill(1)
A('s_nop 3')
SB = [0, 4, 8, 12, 16, 20, 22, 26, 30]
def slot_of(u): return (u + 2) % 3
def q_a(u, masked=False):
    for q in range(SB[u + 1] - SB[u]):
        def one(q=q):
            A(f's_add_u32 m0, {sA0}, {slot_of(u)*32768 + q*1024}')
            if u < 6:
                advance(SB[u] + q, sHO, 1024, sHS, sHM, sHE, sHO2)
                if masked: A(f's_mov_b64 exec, {sEX}')
                dma(vL16, S_WS, sHO, 0, tag=f'a{u}', sc1=True)
                if masked: A('s_mov_b64 exec, -1')
            else:
                if SB[u] + q > 22: A(f's_add_u32 {sOO}, {sOO}, 1024'); A(f's_and_b32 {sOO}, {sOO}, 0x1fff')
                A(f's_add_u32 {sD0}, {sOO}, {sOB}')
                dma(vL16, S_WS, sD0, 0, tag=f'a{u}', sc1=True)
        FILL.append(one)
MASKS = []
def QN(t): return 2 if t in (opt('--x3', 5) + 1, opt('--x3', 5) + 2) and t < 8 else 1
def pv(t, g):
    vb = vVB + 8 * (t & 1) + 4 * g
    A(f'v_mfma_f32_32x32x16_bf16 {vr(vO,16)}, {vr(vb,4)}, {vr(vP+4*g,4)}, {0 if (t, g) == (0, 0) else vr(vO,16)}')
def tile(t, nf):
    cur, nxt = Sb(t), Sb(t + 1)
    A.wait(lg=f'kv{t}')
    if t < 7:
        L = A.label('msk'); MASKS.append((L, vCB))
        A(f's_cmp_eq_u32 {sTMAX}, {t}'); A(f's_cbranch_scc1 {L}'); A(f'{L}r:')
    elif t > 0: A('s_nop 0')
    if t > 0: pv(t - 1, 1)
    if t < 8: A(f'v_add_u32 v{vVA}, v{vVA}, v{vVST}')
    if t < 7:
        A(f'v_mfma_f32_32x32x16_bf16 {vr(nxt,16)}, {vr(vKB+4*((t+1)&1),4)}, {vr(vQ,4)}, {vr(vCB,16)}')
        k_read(t + 2)
    if t == 7: bias_read(1, nxt, 'b8')
    if t < 8: v_read(t + 1)
    PF = opt('--pf', 0)
    if PF == 1: A('s_setprio 1')
    if PF == 2: A('s_setprio 0')
    for r in range(8): A(f'v_exp_f32 v{cur+r}, v{cur+r}')
    if PF == 1: A('s_setprio 0')
    if t == 7:
        L = A.label('msk'); MASKS.append((L, nxt))
        A.wait(lg='b8')
        A(f's_cmp_le_u32 {sTMAX}, 7'); A(f's_cbranch_scc1 {L}'); A(f'{L}r:')
        A(f'v_mfma_f32_32x32x16_bf16 {vr(nxt,16)}, {vr(vKB,4)}, {vr(vQ,4)}, {vr(nxt,16)}')
    elif nf > 0 and FILL: fill(QN(t))
    else: A('s_nop 0')
    rfill(NR)
    for r in range(4): A(f'v_cvt_pk_bf16_f32 v{vP+r}, v{cur+2*r}, v{cur+2*r+1}')
    for r in range(8, 12): A(f'v_exp_f32 v{cur+r}, v{cur+r}')
    pv(t, 0)
    rfill(NR)
    if nf > 1: fill(QN(t))
    for r in range(12, 16): A(f'v_exp_f32 v{cur+r}, v{cur+r}')
    if nf > 2: fill(QN(t))
    rfill(NR)
    if PF == 2 and t < 8: A('s_setprio 1')
    for r in range(4): A(f'v_cvt_pk_bf16_f32 v{vP+4+r}, v{cur+8+2*r}, v{cur+8+2*r+1}')
X2, X3, PUBH, HP, NF, NR = opt('--x2', 4), opt('--x3', 5), opt('--pubh', 1), opt('--hp', 5), opt('--nf', 3), 7
X1 = 0 if PMB else 1
sEARLY = sA2; sEX = 's[22:23]'; sHO0 = sKV0
PHASE[0] = 'att'
for t in range(9):
    NR = -(-len(RF) // 3)
    tile(t, NF)
    assert not RF
    if t == 0 and not PMB: A.wait(vm='bB'); A('s_barrier'); b_reads(6, L_RB, 'brb', queue=True, areg=34)
    if t == X1: A.wait(lg='brb'); A('s_barrier'); q_b(18, L_RB, 'bC2', 4); q_b(22, L_RB + 8192, 'bW', 2)
    if t == PUBH: A.wait(vm='hst'); publish(FH)
    if t == X2:
        assert not FILL
        A.wait(vm='bC2'); A('s_barrier'); b_reads(12, L_RA, 'brc1', queue=True, areg=34); b_reads(18, L_RB, 'brc2', 4, queue=True, areg=35)
    if t == X3:
        A.wait(lg='brc2'); A('s_barrier'); q_b(24, L_RB, 'bD', 4)
        A(f's_lshl_b32 {sT2}, {sKQ}, 13'); A(f's_sub_u32 {sT3}, {sBL}, {sT2}')
        q_b(28, L_RA, 'bD', 2, base=sT3)
        mk_srd(S_B, 26, 1024)
        A(f'v_and_b32 v{t1}, 7, v0'); A(f'v_lshlrev_b32 v{t1}, 4, v{t1}'); A(f's_lshl_b32 {sT0}, {sV}, 7')
    if t == HP: poll_issue(vPHA, vPD, 'hpoll')
    if t == HP + 1:
        A.wait(vm='hpoll')
        A(f'v_cmp_ne_u64 vcc, {sNON}, {vr(vPD,2)}'); A(f's_mov_b32 {sHO0}, {sHO}')
        A(f's_cmp_eq_u64 vcc, 0'); A(f's_cselect_b64 {sEX}, -1, 0'); A(f's_cselect_b32 {sEARLY}, 1, 0')
        keep = list(FILL); FILL.clear()
        FILL.extend(keep); q_a(0, masked=True)
    if t == 7:
        FILL.append(lambda: A(f'buffer_load_dwordx4 {vr(vXR,4)}, v{vROW}, {S_X}, {sOUT} offen', tag='xr'))
        FILL.append(lambda: A(f'buffer_load_dwordx4 {vr(vB2,4)}, v{t1}, {S_B}, {sT0} offen', tag='xr'))
    stamp(f'tile{t}')
A('s_nop 0'); A.wait(lg=0); pv(8, 1)
flush()
PHASE[0] = 'fin'
A(f's_mov_b32 {sSPIN}, {f32(2.0**-64) if not FORCE_FB else f32(2.0**100)}'); A(f's_mov_b32 {sT1}, {f32(2.0**64)}'); A('s_nop 9')
A(f'v_cmp_le_f32 vcc, {sSPIN}, v{vO+8}'); A(f'v_cmp_ge_f32 {sCMP}, {sT1}, v{vO+8}')
A(f's_and_b64 vcc, vcc, {sCMP}'); A('s_cmp_eq_u64 vcc, -1'); A('s_cbranch_scc0 L_fallback')
A('L_attfin:')
A(f'v_rcp_f32 v{t0}, v{vO+8}'); A('s_nop 0')
scale(vO, 8, t0)
for r in range(4): A(f'v_cvt_pk_bf16_f32 v{vP+r}, v{vO+2*r}, v{vO+2*r+1}')
A(f'buffer_store_dwordx4 {vr(vP,4)}, v{vL16}, {S_WS}, {sOST} offen sc1', tag='ost')

assert not FILL
stamp('ost')
T4M = 8
LATE = Asm(); LATE.nlabel = 2000
A_main = A
A.wait(vm='bD'); A('s_barrier')
b_reads(28, L_RA, 'brd', 2, adj=sT2, areg=34); b_reads(22, L_RB + 8192, 'brd', 2, queue=True, areg=35)
A(f's_cmp_eq_u32 {sEARLY}, 0'); A('s_cbranch_scc1 L_late')
A('L_late_ret:')
A = LATE
A('L_late:'); A('s_waitcnt vmcnt(0)'); publish(FO); A(f's_mov_b32 {sHO}, {sHO0}')
poll_issue(vPHA, vPD, 'hp2'); poll_finish(vPHA, vPD, 'hp2')
q_a(0); flush(); A('s_waitcnt vmcnt(0)'); A('s_branch L_late_ret')
A = A_main
q_a(1)
while FILL: fill(); rfill(1)
b_reads(24, L_RB, 'brd', 4, areg=34)
A.wait(vm='a0', lg=0); stamp('a0'); A('s_barrier')
def resid():
    for r in range(4):
        A(f'v_lshlrev_b32 v{vE+2*r}, 16, v{vXR+r}'); A(f'v_and_b32 v{vE+2*r+1}, 0xffff0000, v{vXR+r}')
        A(f'v_lshlrev_b32 v{vXR+r}, 16, v{vB2+r}'); A(f'v_and_b32 v{vB2+r}, 0xffff0000, v{vB2+r}')
        A(f'v_add_f32 v{vE+2*r}, v{vE+2*r}, v{vXR+r}'); A(f'v_add_f32 v{vE+2*r+1}, v{vE+2*r+1}, v{vB2+r}')
def stage_of(mm): return max(u for u in range(8) if SB[u] <= mm)
def a_reads(mm):
    u = stage_of(mm); ab = vAB + 8 * (mm % 3); q = mm - SB[u]; sl = slot_of(u); a, o = (vAS[0], sl * 32768) if sl < 2 else (vAS[1], 0)
    A(f'ds_read_b128 {vr(ab,4)}, v{a} offset:{o + q*1024}', tag=f'ar{mm}')
    A(f'ds_read_b128 {vr(ab+4,4)}, v{a} offset:{o + 4096 + q*1024}', tag=f'ar{mm}')
def a_mfmas(mm):
    ab = vAB + 8 * (mm % 3); bf = bf_reg(mm); z = mm == 0
    if mm == 21:
        Lk = A.label('k21'); A(f's_cmp_ge_u32 {sKQ}, 2'); A(f's_cbranch_scc1 {Lk}'); A.opt_begin()
    A(f'v_mfma_f32_32x32x16_bf16 {vr(vAC0,16)}, {vr(ab,4)}, {vr(bf,4)}, {0 if z else vr(vAC0,16)}')
    A(f'v_mfma_f32_32x32x16_bf16 {vr(vAC1,16)}, {vr(ab+4,4)}, {vr(bf,4)}, {0 if z else vr(vAC1,16)}')
    if mm == 21: A.opt_end(); A(f'{Lk}:')
a_reads(0); a_reads(1)
q_a(2)
PHASE[0] = 't4'
for mm in range(29):
    if mm + 2 in SB:
        u = SB.index(mm + 2)
        flush()
        A.wait(lg=0); a_mfmas(mm)
        if u < 8: A.wait(vm=f'a{u}')
        if u == 1: publish(FO)
        stamp(f'a{u}')
        A('s_barrier')
        if u < 8: a_reads(mm + 2)
        else: a_mfmas(29)
        if u == 4: poll_finish(vPOA, vPD, 'opoll')
        if u + 2 <= 7:
            old = list(FILL); FILL.clear(); q_a(u + 2); FILL.extend(old); fill()
        if u == opt('--resid', 3): resid()
        if u == 3: FILL.append(lambda: poll_issue(vPOA, vPD, 'opoll'))
    else:
        if mm + 1 not in SB: A.wait(lg=f'ar{mm}')
        a_mfmas(mm); a_reads(mm + 2); rfill(4); fill(2 if len(FILL) > 3 else 1)
PHASE[0] = 'red'
A(f's_mul_i32 {sT0}, {sW}, {32*REDP}'); A(f's_mov_b32 m0, {sT0}')
A('s_nop 8')
for r in range(32): A(f'ds_write_addtid_b32 v{vAC0+r} offset:{r*REDP}', tag='red')
A.wait(lg=0); stamp('redw'); A('s_barrier')
vR = 160
for q in range(4):
    A(f'ds_read_b128 {vr(vR+8*q,4)}, v{vRED} offset:{q*64*REDP}', tag=f'rr{q}'); A(f'ds_read_b128 {vr(vR+8*q+4,4)}, v{vRED} offset:{q*64*REDP+16}', tag=f'rr{q}')
for q in range(4):
    A.wait(lg=f'rr{q}')
    for r in range(0, 8, 2): A(f'v_pk_add_f32 {vr(vE+r,2)}, {vr(vE+r,2)}, {vr(vR+8*q+r,2)}')
for r in range(4): A(f'v_cvt_pk_bf16_f32 v{vE+r}, v{vE+2*r}, v{vE+2*r+1}')
A(f'buffer_store_dwordx4 {vr(vE,4)}, v{vROW}, {S_OUT}, {sOUT} offen {sys.argv[sys.argv.index("--outst")+1].replace("+"," ") if flag("--outst") else ""}', tag='out')
if STAMPS:
    stamp('end', True)
    A(f's_lshl_b32 {sT0}, s2, 3'); A(f's_add_u32 {sT0}, {sT0}, {sW}'); A(f's_lshl_b32 {sT0}, {sT0}, 8'); A(f's_add_u32 {sT0}, {sT0}, {ST}')
    A(f's_memrealtime {sSTMP}'); A('s_waitcnt lgkmcnt(0)'); A(f'v_writelane_b32 v{vSTMP}, s96, 63'); A(f'v_writelane_b32 v{vSTMP}, {sEARLY}, 59')
    A(f'v_lshlrev_b32 v{t0}, 2, v0'); A(f'buffer_store_dword v{vSTMP}, v{t0}, {S_WS}, {sT0} offen')
    if flag('--dbgout'):
        A(f'v_readlane_b32 {sT1}, v{vSTMP}, 62'); A(f's_sub_u32 s96, s96, {sT1}'); A(f'v_writelane_b32 v{vSTMP}, s96, 13')
        A(f's_cmp_eq_u32 s2, 40'); A(f's_cselect_b32 {sT0}, {sW}, 1'); A(f's_cmp_eq_u32 {sT0}, 0'); A(f's_cselect_b64 exec, 0x3fff, 0')
        A(f'buffer_store_dword v{vSTMP}, v{t0}, {S_DBG}, 0 offen offset:8')
if opt('--spin', 0):
    A(f's_mov_b32 {sT0}, {opt("--spin", 0)}'); A('L_spin:'); A('s_nop 15'); A(f's_sub_u32 {sT0}, {sT0}, 1'); A(f's_cmp_lg_u32 {sT0}, 0'); A('s_cbranch_scc1 L_spin')
if opt('--deadline', 0):
    A('L_dl:'); A('s_memrealtime s[96:97]'); A('s_waitcnt lgkmcnt(0)'); A('s_sub_u32 s96, s96, s98'); A(f's_cmp_lt_u32 s96, {opt("--deadline", 0)}'); A('s_cbranch_scc1 L_dl')
A('L_end:')
A('s_endpgm')
main = list(A.ins)

B = Asm(); B.nlabel = 1000
B('L_nonce:')
B(f's_memrealtime {sNON}')
b = srd(S_DBG)
B(f's_mov_b32 s{b}, s22'); B(f's_and_b32 s{b+1}, s23, 0xffff'); B(f's_mov_b32 s{b+2}, 256'); B(f's_mov_b32 s{b+3}, 0x20000')
B('s_waitcnt lgkmcnt(0)')
B(f's_or_b32 {sNH}, {sNH}, 0x80000000'); B(f'v_mov_b32 v96, {sNL}'); B(f'v_mov_b32 v97, {sNH}')
B('s_mov_b64 exec, 1')
B(f'buffer_store_dwordx2 v[96:97], off, {S_DBG}, 0 sc1')
B('s_mov_b64 exec, -1'); B('s_branch L_nonce_ret')
B('L_nonspin:')
B(f's_mov_b32 {sSPIN}, 0')
B('L_nonspin_l:')
B(f'buffer_load_dwordx2 {vr(vNON,2)}, off, {S_DBG}, 0 sc1')
B(f's_add_u32 {sSPIN}, {sSPIN}, 1'); B('s_waitcnt vmcnt(0)')
B(f'v_readfirstlane_b32 {sNH}, v{vNON+1}'); B(f'v_readfirstlane_b32 {sNL}, v{vNON}'); B(f's_cmp_ge_u32 {sSPIN}, 0x8000'); B('s_cbranch_scc1 L_nonspin_ret')
B(f's_cmp_eq_u32 {sNH}, 0'); B('s_cbranch_scc1 L_nonspin_l'); B('s_branch L_nonspin_ret')
for L in SPINS4:
    B(f'{L}:'); B(f's_mov_b32 {sSPIN}, 0'); B(f'{L}l:')
    B(f'buffer_load_dwordx4 {vr(vRS,4)}, v{vGA}, {S_WS}, 0 offen sc1')
    B(f's_add_u32 {sSPIN}, {sSPIN}, 1'); B('s_waitcnt vmcnt(0)')
    B(f'v_cmp_ne_u64 vcc, {sNON}, {vr(vRS+2,2)}')
    B(f's_cmp_ge_u32 {sSPIN}, 0x8000'); B(f's_cbranch_scc1 {L}r')
    B(f's_cbranch_vccnz {L}l'); B(f's_branch {L}r')
for L, E, vaddr, P in SPINS:
    B(f'{L}:'); B(f's_mov_b32 {sSPIN}, 0'); B(f'{L}l:')
    B(f'buffer_load_dwordx2 {vr(P,2)}, v{vaddr}, {S_WS}, 0 offen sc1')
    B(f's_add_u32 {sSPIN}, {sSPIN}, 1'); B('s_waitcnt vmcnt(0)')
    B(f'v_cmp_ne_u64 vcc, {sNON}, {vr(P,2)}')
    B(f's_cmp_ge_u32 {sSPIN}, 0x8000'); B(f's_cbranch_scc1 {E}')
    B(f's_cbranch_vccnz {L}l'); B(f's_branch {E}')
for L, dst in MASKS:
    B(f'{L}:'); B('s_nop 7')
    for r in range(16): B(f'v_mov_b32 v{dst+r}, {NEG}')
    B('s_nop 0'); B(f's_branch {L}r')
vKA2, vM, vVA2 = 128, 129, 130
S0, S1 = vS0, vS0 + 16
B('L_fallback:')
B(f's_min_u32 {sT4}, {sTMAX}, 8')
def fb_scores():
    L1 = B.label('fb')
    B(f'ds_read_b128 {vr(vKB,4)}, v{vKA2}'); B('s_waitcnt lgkmcnt(0)')
    B(f'v_mfma_f32_32x32x16_bf16 {vr(S0,16)}, {vr(vKB,4)}, {vr(vQ,4)}, 0')
    B(f's_and_b32 {sT1}, {sT3}, 7'); B(f's_cmp_lg_u32 {sT1}, 0'); B('s_nop 15'); B(f's_cbranch_scc1 {L1}')
    B(f's_lshl_b32 {sT1}, {sT3}, 9'); B(f'v_add_u32 v{vM+2}, {sT1}, v{vBIA}')
    for g in range(4): B(f'ds_read_b128 {vr(S1+4*g,4)}, v{vM+2} offset:{g*1024}')
    B('s_waitcnt lgkmcnt(0)')
    for r in range(16): B(f'v_add_f32 v{S0+r}, v{S0+r}, v{S1+r}')
    B(f'{L1}:')
B(f's_mov_b32 {sT3}, 0'); B(f'v_add_u32 v{vKA2}, 8192, v{vKA}'); B(f'v_mov_b32 v{vM}, {f32(-3e38)}')
La = B.label('fa'); B(f'{La}:')
fb_scores()
for r in range(8): B(f'v_max3_f32 v{vM}, v{vM}, v{S0+2*r}, v{S0+2*r+1}')
B(f'v_subrev_u32 v{vKA2}, 1024, v{vKA2}'); B(f's_add_u32 {sT3}, {sT3}, 1'); B(f's_cmp_le_u32 {sT3}, {sT4}'); B(f's_cbranch_scc1 {La}')
B(f'v_mov_b32 v{vM+3}, v{vM}'); B('s_nop 1'); B(f'v_permlane32_swap_b32 v{vM}, v{vM+3}'); B(f'v_max_f32 v{vM}, v{vM}, v{vM+3}')
B(f'v_lshlrev_b32 v{vVA2}, 3, v{vVST}'); B(f'v_sub_u32 v{vVA2}, v{vVA}, v{vVA2}')
B(f's_mov_b32 {sT3}, 0'); B(f'v_add_u32 v{vKA2}, 8192, v{vKA}')
for r in range(16): B(f'v_mov_b32 v{vO+r}, 0')
Lb = B.label('fbb'); B(f'{Lb}:')
for q in range(4): B(f'ds_read_b64_tr_b16 {vr(vVB+2*q,2)}, v{vVA2} offset:{q*256}')
fb_scores()
for r in range(16): B(f'v_sub_f32 v{S0+r}, v{S0+r}, v{vM}')
for r in range(16): B(f'v_exp_f32 v{S0+r}, v{S0+r}')
B('s_nop 0')
for r in range(8): B(f'v_cvt_pk_bf16_f32 v{vP+r}, v{S0+2*r}, v{S0+2*r+1}')
B('s_nop 1')
B(f'v_mfma_f32_32x32x16_bf16 {vr(vO,16)}, {vr(vVB,4)}, {vr(vP,4)}, {vr(vO,16)}')
B(f'v_mfma_f32_32x32x16_bf16 {vr(vO,16)}, {vr(vVB+4,4)}, {vr(vP+4,4)}, {vr(vO,16)}')
B(f'v_subrev_u32 v{vKA2}, 1024, v{vKA2}'); B(f'v_add_u32 v{vVA2}, v{vVA2}, v{vVST}')
B(f's_add_u32 {sT3}, {sT3}, 1'); B(f's_cmp_le_u32 {sT3}, {sT4}'); B(f's_cbranch_scc1 {Lb}')
B('s_nop 15'); B('s_branch L_attfin')
B.ins += LATE.ins
B('L_codeend:')

probs = check(main, True) + check(main, False) + check(B.ins, True)
for p in dict.fromkeys(probs): print(p, file=sys.stderr)

hdr = open('parallel_sum__sliding_block__mixer_channel_mlp__prompt.s.ref').read().split('; Override launch')[0]
text = hdr + f'''; @launch grid=(256,1,1) block=(512,1,1) lds={LDS_BYTES}
.amdgcn_target "amdgcn-amd-amdhsa--gfx950"
.text
.globl {NAME}
.p2align 8
.type {NAME},@function
{NAME}:
''' + A.text() + '\n' + B.text() + f'''
s_endpgm
.section .rodata,"a"
.p2align 6
.amdhsa_kernel {NAME}
  .amdhsa_next_free_vgpr 256
  .amdhsa_next_free_sgpr 102
  .amdhsa_accum_offset 256
  .amdhsa_group_segment_fixed_size 0
  .amdhsa_kernarg_size 88
  .amdhsa_user_sgpr_count 2
  .amdhsa_user_sgpr_kernarg_segment_ptr 1
  .amdhsa_system_sgpr_workgroup_id_x 1
  .amdhsa_float_denorm_mode_32 3
.end_amdhsa_kernel
'''
open(OUT, 'w').write(text)
if STAMPS: open(OUT + '.stamps', 'w').write('\n'.join(stamp_names))
print('instructions', len(main) + len(B.ins), 'problems', len(probs))
```

```python
import sys
from asmlib import *
def stream(name, threads, inflight, abytes, bbytes, rowsPerXcd, colsPerXcd, rowGroups, mode, passes=2, aux="", rot=None, nwg=256, spf=0):
    nw = threads // 64
    na, nb = abytes // 1024, bbytes // 1024
    L = []
    a = L.append
    a(f"s_cmp_ge_u32 s2, {nwg}"); a(f"s_cbranch_scc1 {name}_end")
    a("s_load_dwordx4 s[4:7], s[0:1], 0"); a("s_load_dwordx2 s[8:9], s[0:1], 16")
    a("s_and_b32 s10, s2, 7"); a("s_lshr_b32 s11, s2, 3")
    import math
    lg = int(math.log2(rowGroups)); lr = int(math.log2(rowsPerXcd))
    a(f"s_and_b32 s12, s10, {rowGroups-1}"); a(f"s_lshr_b32 s13, s10, {lg}")
    a(f"s_mul_i32 s12, s12, {rowsPerXcd}"); a(f"s_and_b32 s14, s11, {rowsPerXcd-1}"); a("s_add_u32 s12, s12, s14")
    a(f"s_mul_i32 s13, s13, {colsPerXcd}"); a(f"s_lshr_b32 s14, s11, {lr}"); a("s_add_u32 s13, s13, s14")
    a(f"s_mul_i32 s12, s12, {abytes}"); a(f"s_mul_i32 s13, s13, {bbytes}")
    a("v_lshrrev_b32 v1, 6, v0"); a("s_nop 0"); a("v_readfirstlane_b32 s15, v1")
    a("v_and_b32 v2, 63, v0"); a("v_lshlrev_b32 v2, 4, v2")
    a("s_waitcnt lgkmcnt(0)")
    a("s_mov_b32 s16, s4"); a("s_and_b32 s17, s5, 0xffff"); a(f"s_mov_b32 s18, {64<<20}"); a("s_mov_b32 s19, 0x20000")
    a("s_mov_b32 s20, s6"); a("s_and_b32 s21, s7, 0xffff"); a(f"s_mov_b32 s22, {64<<20}"); a("s_mov_b32 s23, 0x20000")
    a("s_mov_b32 s24, s8"); a("s_and_b32 s25, s9, 0xffff"); a(f"s_mov_b32 s26, {1<<20}"); a("s_mov_b32 s27, 0x20000")
    a(f"s_mul_i32 s28, s15, {inflight*1024}")
    a("s_mov_b32 s40, 0"); a("v_mov_b32 v100, 0")
    a(f"{name}_pass:")
    a("s_barrier")
    a("s_memrealtime s[32:33]"); a("s_memtime s[34:35]")
    if spf:
        assert threads == 256 and rowsPerXcd == 8 and colsPerXcd == 4
        a("s_waitcnt lgkmcnt(0)")
        a("s_lshl_b32 s52, s11, 2"); a("s_add_u32 s52, s52, s15")
        a(f"s_and_b32 s53, s10, {rowGroups-1}"); a(f"s_mul_i32 s53, s53, {rowsPerXcd*abytes}")
        a("s_lshr_b32 s54, s52, 4"); a(f"s_mul_i32 s54, s54, {abytes}"); a("s_add_u32 s53, s53, s54")
        a("s_and_b32 s54, s52, 15"); a("s_lshl_b32 s54, s54, 9"); a("s_add_u32 s53, s53, s54")
        a("s_add_u32 s56, s4, s53"); a("s_addc_u32 s57, s5, 0")
        a(f"s_lshr_b32 s53, s10, {lg}"); a(f"s_mul_i32 s53, s53, {colsPerXcd*bbytes}")
        a("s_lshr_b32 s54, s52, 5"); a(f"s_mul_i32 s54, s54, {bbytes}"); a("s_add_u32 s53, s53, s54")
        a("s_and_b32 s54, s52, 31"); a("s_mul_i32 s54, s54, 384"); a("s_add_u32 s53, s53, s54")
        a("s_add_u32 s58, s6, s53"); a("s_addc_u32 s59, s7, 0")
        n = 0
        for t in range(16):
            for j in range(4 * 128 // spf):
                a(f"s_load_dword s{64 + n % 16}, s[56:57], {t*8192 + j*spf}"); n += 1
            for j in range(3 * 128 // spf):
                a(f"s_load_dword s{64 + n % 16}, s[58:59], {t*12288 + j*spf}"); n += 1
        a("s_memtime s[60:61]"); a("s_waitcnt lgkmcnt(0)"); a("s_sub_u32 s60, s60, s34"); a("v_writelane_b32 v100, s60, 16")
        a("s_memtime s[60:61]"); a("s_waitcnt lgkmcnt(0)"); a("s_sub_u32 s60, s60, s34"); a("v_writelane_b32 v100, s60, 17")
    a("s_lshl_b32 s29, s15, 10"); a("s_add_u32 s30, s12, s29"); a("s_add_u32 s31, s13, s29")
    pa, pb = na // nw, nb // nw
    g = math.gcd(pa, pb)
    ua, ub = pa // g, pb // g
    iters = g
    body = []
    seq = []
    ia = ib = 0
    while ia < ua or ib < ub:
        if ia * ub <= ib * ua and ia < ua: seq.append('a'); ia += 1
        else: seq.append('b'); ib += 1
    a(f"s_mov_b32 s41, {iters}")
    a("s_mov_b32 s42, 0")
    if rot:
        mr, mc, den = rot
        a(f"s_and_b32 s46, s11, {rowsPerXcd-1}"); a(f"s_lshr_b32 s47, s11, {lr}")
        a(f"s_mul_i32 s46, s46, {mr}"); a(f"s_mul_i32 s47, s47, {mc}"); a("s_add_u32 s46, s46, s47")
        a(f"s_and_b32 s46, s46, {den-1}"); a(f"s_mul_i32 s46, s46, {iters}"); a(f"s_lshr_b32 s46, s46, {int(math.log2(den))}")
    else:
        a("s_mov_b32 s46, 0")
    a(f"{name}_loop:")
    a(f"s_mul_i32 s30, s46, {abytes//iters}"); a("s_add_u32 s30, s30, s12"); a("s_add_u32 s30, s30, s29")
    a(f"s_mul_i32 s31, s46, {bbytes//iters}"); a("s_add_u32 s31, s31, s13"); a("s_add_u32 s31, s31, s29")
    a("s_add_u32 s46, s46, 1"); a(f"s_cmp_eq_u32 s46, {iters}"); a("s_cselect_b32 s46, 0, s46")
    for j, s in enumerate(seq):
        srd = "s[16:19]" if s == 'a' else "s[20:23]"
        so = "s30" if s == 'a' else "s31"
        if mode == 0:
            a("s_add_u32 m0, s28, s42")
            a("s_add_u32 s42, s42, 1024"); a(f"s_and_b32 s42, s42, {inflight*1024-1}")
            a(f"buffer_load_dwordx4 v2, {srd}, {so} offen {aux} lds")
        else:
            r = 8 + 4 * (j % inflight)
            a(f"buffer_load_dwordx4 v[{r}:{r+3}], v2, {srd}, {so} offen {aux}")
        a(f"s_add_u32 {so}, {so}, {nw*1024}")
        a(f"s_waitcnt vmcnt({inflight-1})")
    a("s_memtime s[48:49]"); a(f"s_sub_u32 s50, {iters}, s41"); a("s_waitcnt lgkmcnt(0)"); a("s_sub_u32 s48, s48, s34"); a("s_mov_b32 m0, s50"); a("s_nop 0"); a("v_writelane_b32 v100, s48, m0")
    a("s_sub_u32 s41, s41, 1"); a("s_cmp_lg_u32 s41, 0"); a(f"s_cbranch_scc1 {name}_loop")
    a("s_waitcnt vmcnt(0)"); a("s_barrier")
    a("s_memtime s[38:39]"); a("s_memrealtime s[36:37]"); a("s_waitcnt lgkmcnt(0)")
    a("v_cmp_gt_u32 vcc, 64, v0"); a("s_and_saveexec_b64 s[44:45], vcc"); a(f"s_cbranch_execz {name}_skip2")
    a("s_lshl_b32 s43, s40, 8"); a("s_add_u32 s43, s43, s2"); a("s_lshl_b32 s43, s43, 8"); a("s_add_u32 s43, s43, 65536")
    a("v_lshlrev_b32 v3, 2, v0"); a("v_add_u32 v3, s43, v3")
    a("buffer_store_dword v100, v3, s[24:27], 0 offen"); a("s_waitcnt vmcnt(0)")
    a(f"{name}_skip2:"); a("s_mov_b64 exec, s[44:45]")
    a("v_cmp_eq_u32 vcc, 0, v0"); a("s_and_saveexec_b64 s[44:45], vcc"); a(f"s_cbranch_execz {name}_skip")
    a("s_lshl_b32 s43, s40, 8"); a("s_add_u32 s43, s43, s2"); a("s_lshl_b32 s43, s43, 5")
    a("v_mov_b32 v3, s43")
    for k in range(8): a(f"v_mov_b32 v{4+k}, s{32+k}")
    a("buffer_store_dwordx4 v[4:7], v3, s[24:27], 0 offen"); a("buffer_store_dwordx4 v[8:11], v3, s[24:27], 0 offen offset:16")
    a("s_waitcnt vmcnt(0)")
    a(f"{name}_skip:"); a("s_mov_b64 exec, s[44:45]")
    a("s_add_u32 s40, s40, 1"); a(f"s_cmp_lt_u32 s40, {passes}"); a(f"s_cbranch_scc1 {name}_pass")
    a(f"{name}_end:")
    return kernel_text(name, "\n".join(L), vgpr=104), nw * inflight * 1024 if mode == 0 else 0

cfgs = []
def add(nm, thr, infl, ab, bb, r, c, rg, mode, aux="", rot=None, nwg=256, spf=0):
    cfgs.append(dict(spf=spf, name=f"{nm}_s{spf}_t{thr}_i{infl}_m{mode}{aux.replace(' ','')}_r{0 if not rot else 1}_n{nwg}_kernel", threads=thr, inflight=infl, abytes=ab, bbytes=bb, rowsPerXcd=r, colsPerXcd=c, rowGroups=rg, mode=mode, aux=aux, rot=rot, nwg=nwg))
for aux in ("", "nt", "sc0", "sc1", "sc0 sc1", "sc0 nt", "sc1 nt", "sc0 sc1 nt"):
    add("few", 512, 16, 128 << 10, 192 << 10, 1, 1, 8, 0, aux=aux, nwg=8)
add("few", 512, 16, 128 << 10, 192 << 10, 1, 1, 8, 1, aux="", nwg=8)
add("few", 512, 16, 128 << 10, 192 << 10, 1, 1, 8, 1, aux="nt", nwg=8)
add("few", 1024, 8, 128 << 10, 192 << 10, 1, 1, 8, 1, aux="", nwg=8)
txt = ""; launches = []
for c in cfgs:
    t, lds = stream(**c); txt += t; launches.append((c["name"], 256, c["threads"], lds))
build("bw.s", launches, txt)
import json; json.dump([(c["name"], c["threads"], c["abytes"] + c["bbytes"], l[3], c["nwg"]) for c, l in zip(cfgs, launches)], open("bw.json", "w"))
print("ok", len(cfgs))
```
